```python
import torch

def _softmax(x, axis=-1):
    return torch.softmax(x, dim=axis)
def _gelu(x):
    return torch.nn.functional.gelu(x, approximate="tanh")
def _silu(x):
    return torch.nn.functional.silu(x)
def _sigmoid(x):
    return torch.sigmoid(x)
def _layernorm(x, axis=-1, eps=1e-5):
    m = x.mean(dim=axis, keepdim=True)
    v = x.var(dim=axis, keepdim=True, unbiased=False)
    return (x - m) / torch.sqrt(v + eps)
def _scatter_add(tgt, idx, src, axis=0):
    return tgt.clone().index_add_(axis, idx, src)
def _segment_sum(src, seg, n):
    out = torch.zeros((n,) + src.shape[1:], dtype=src.dtype)
    return out.index_add_(0, seg, src)
def _pad(x, pw):
    flat = tuple(v for pair in reversed(pw) for v in pair)
    return torch.nn.functional.pad(x, flat)

kernel_name = 'gated_mix__spectral_fnet__dense_activation_squared_relu__prompt'

def setup_inputs():

    _w = (lambda a: (lambda t: t.to(torch.bfloat16) if t.is_floating_point() else t)(torch.as_tensor(a)))
    def _A_setup():
        B, S, D = 1, 2048, 1024
        ns = torch.arange(S)[:, None] * torch.arange(S)[None, :]
        nd = torch.arange(D)[:, None] * torch.arange(D)[None, :]
        Ws_re = torch.cos(-2.0 * torch.pi * ns / S).to(float)
        Ws_im = torch.sin(-2.0 * torch.pi * ns / S).to(float)
        Wd_re = torch.cos(-2.0 * torch.pi * nd / D).to(float)
        Wd_im = torch.sin(-2.0 * torch.pi * nd / D).to(float)
        return {
            "x": _w((lambda *s: torch.randn(*s, dtype=torch.bfloat16) * 0.05)(B, S, D)),
            "dft_seq_re": _w(Ws_re),
            "dft_seq_im": _w(Ws_im),
            "dft_hid_re": _w(Wd_re),
            "dft_hid_im": _w(Wd_im),
        }
    _A_in = _A_setup()

    def _B_setup():
        B, S, D, F = 1, 2048, 1024, 3584
        return {
            "x": _w((lambda *s: torch.randn(*s, dtype=torch.bfloat16) * 0.05)(B, S, D)),
            "w1": _w((lambda *s: torch.randn(*s, dtype=torch.bfloat16) * 0.4)(D, F)),
            "b1": _w((lambda *s: torch.randn(*s, dtype=torch.bfloat16) * 0.4)(F)),
            "w2": _w((lambda *s: torch.randn(*s, dtype=torch.bfloat16) * 0.4)(F, D)),
            "b2": _w((lambda *s: torch.randn(*s, dtype=torch.bfloat16) * 12.8)(D)),
        }
    _B_in = _B_setup()

    return {
        "A_x": _A_in["x"],
        "A_dft_seq_re": _A_in["dft_seq_re"],
        "A_dft_seq_im": _A_in["dft_seq_im"],
        "A_dft_hid_re": _A_in["dft_hid_re"],
        "A_dft_hid_im": _A_in["dft_hid_im"],
        "B_x": _B_in["x"],
        "B_w1": _B_in["w1"],
        "B_b1": _B_in["b1"],
        "B_w2": _B_in["w2"],
        "B_b2": _B_in["b2"],
        "gate_w": _w((lambda *s: torch.randn(*s, dtype=torch.bfloat16) * 0.05)(1024) * 16.0),
    }

def reference(A_x, A_dft_seq_re, A_dft_seq_im, A_dft_hid_re, A_dft_hid_im, B_x, B_w1, B_b1, B_w2, B_b2, gate_w):
    def _A_ref(x, dft_seq_re, dft_seq_im, dft_hid_re, dft_hid_im):
        a = torch.einsum("bsd,ed->bse", x, dft_hid_re)
        b = torch.einsum("bsd,ed->bse", x, dft_hid_im)
        y = torch.einsum("ts,bse->bte", dft_seq_re, a) - torch.einsum("ts,bse->bte", dft_seq_im, b)
        return y

    def _B_ref(x, w1, b1, w2, b2):
        h = torch.einsum("bsd,df->bsf", x, w1) + b1
        zero = torch.zeros_like(h)
        r = torch.where(h > zero, h, zero)
        h = r * r
        out = torch.einsum("bsf,fd->bsd", h, w2) + b2
        return out

    x = A_x
    g = _sigmoid((x * gate_w).sum(-1, keepdims=True))
    a = _A_ref(x, A_dft_seq_re, A_dft_seq_im, A_dft_hid_re, A_dft_hid_im)
    b = _B_ref(x, B_w1, B_b1, B_w2, B_b2)
    return g * a + (1 - g) * b
```

```python
NAME = 'gated_mix__spectral_fnet__dense_activation_squared_relu__prompt'
HEADER_COMMENT = """; Kernarg layout (112 bytes, ptrs only, base s[0:1]):
"""
class Asm:
    def __init__(self):
        self.lines = []
        self.uid = 0
    def __call__(self, s=''):
        for l in s.split('\n'):
            self.lines.append(l if (l.strip().endswith(':') or l.startswith('.')) else '    ' + l.strip())
    def raw(self, s):
        self.lines.append(s)
    def label(self, name):
        self.lines.append(name + ':')
    def newlabel(self, pfx='L'):
        self.uid += 1
        return f'{pfx}_{self.uid}'
    def text(self):
        return '\n'.join(self.lines) + '\n'

def kernel_begin(a, name):
    a.raw('.text')
    a.raw(f'.globl {name}')
    a.raw('.p2align 8')
    a.raw(f'.type {name},@function')
    a.raw(f'{name}:')

def kernel_desc(name, vgpr, sgpr=102, accum=None, wg_y=False):
    if accum is None:
        accum = min(256, (vgpr + 3)//4*4)
    s = f""".section .rodata,"a"
.p2align 6
.amdhsa_kernel {name}
  .amdhsa_next_free_vgpr {vgpr}
  .amdhsa_next_free_sgpr {sgpr}
  .amdhsa_accum_offset {accum}
  .amdhsa_group_segment_fixed_size 0
  .amdhsa_kernarg_size 112
  .amdhsa_user_sgpr_count 2
  .amdhsa_user_sgpr_kernarg_segment_ptr 1
  .amdhsa_system_sgpr_workgroup_id_x 1
"""
    if wg_y: s += "  .amdhsa_system_sgpr_workgroup_id_y 1\n"
    s += "  .amdhsa_float_denorm_mode_32 3\n"
    s += ".end_amdhsa_kernel\n"
    return s

def srd(a, d, base, nbytes):
    a(f's_mov_b32 s{d}, s{base}')
    a(f's_and_b32 s{d+1}, s{base+1}, 0xffff')
    a(f's_mov_b32 s{d+2}, {nbytes}')
    a(f's_mov_b32 s{d+3}, 0x00020000')
```

```python
from gemm import *
H_OFF = 0
H_BYTES = 2048*3584*2
VB_OFF = 0x1000000
YT_OFF = 0x1400000
G_OFF = 0x1800000

CC, SC, NSC = 16, 24, 32
ZR, ZI = 40, 48
TR, TI = 64, 80
TC, TS = 96, 112
def cidx(r): return 8*(r>>2) + (r&3)

def gen_consts(a, vlane):
    a(f'v_and_b32 v2, 31, v{vlane}')
    a('v_cvt_f32_u32 v2, v2')
    a('v_mul_f32 v2, 0x3d000000, v2')
    a(f'v_lshrrev_b32 v3, 5, v{vlane}')
    a('v_cvt_f32_u32 v3, v3')
    a('v_mul_f32 v3, 4.0, v3')
    a('v_mul_f32 v3, v3, v2')
    a('v_mul_f32 v4, 0x40a00000, v2')
    for i in range(16):
        if i > 0:
            if i & 3: a('v_add_f32 v3, v3, v2')
            else: a('v_add_f32 v3, v3, v4')
        a('v_fract_f32 v5, v3')
        a(f'v_cos_f32 v{TC+i}, v5')
        a(f'v_sin_f32 v{TS+i}, v5')
    a('s_nop 0')
    for p in range(8):
        a(f'v_cvt_pk_bf16_f32 v{CC+p}, v{TC+2*p}, v{TC+2*p+1}')
        a(f'v_cvt_pk_bf16_f32 v{SC+p}, v{TS+2*p}, v{TS+2*p+1}')
    for p in range(8):
        a(f'v_xor_b32 v{NSC+p}, 0x80008000, v{SC+p}')

def gen_twiddle(a, vlane):
    a(f'v_and_b32 v2, 31, v{vlane}')
    a('v_cvt_f32_u32 v2, v2')
    a('v_mul_f32 v2, 0x3a800000, v2')
    a(f'v_lshrrev_b32 v3, 5, v{vlane}')
    a('v_cvt_f32_u32 v3, v3')
    a('v_mul_f32 v3, 4.0, v3')
    a('v_mul_f32 v3, v3, v2')
    a('v_mul_f32 v4, 0x40a00000, v2')
    for i in range(16):
        if i > 0:
            if i & 3: a('v_add_f32 v3, v3, v2')
            else: a('v_add_f32 v3, v3, v4')
        a(f'v_cos_f32 v{TC+i}, v3')
        a(f'v_sin_f32 v{TS+i}, v3')

def gen_loads(a, vbase, mhs, jjs, ps):
    for p, R in ((0, ZR), (1, ZI)):
        for mh in range(2):
            for jj in range(2):
                a(f'ds_read_b64_tr_b16 v[{R+4*mh+2*jj}:{R+4*mh+2*jj+1}], v{vbase} offset:{p*ps + mh*mhs + jj*jjs}')

def mf(d, aop, bop, c):
    cs = '0' if c is None else f'v[{c}:{c+15}]'
    return f'v_mfma_f32_32x32x16_bf16 v[{d}:{d+15}], v[{aop}:{aop+3}], v[{bop}:{bop+3}], {cs}'

def gen_stageA(a):
    a(mf(TR, ZR, CC, None));     a(mf(TI, ZI, CC, None))
    a(mf(TR, ZR+4, CC+4, TR));   a(mf(TI, ZI+4, CC+4, TI))
    a(mf(TR, ZI, SC, TR));       a(mf(TI, ZR, NSC, TI))
    a(mf(TR, ZI+4, SC+4, TR));   a(mf(TI, ZR+4, NSC+4, TI))

def gen_tw_apply(a):
    a('s_nop 7'); a('s_nop 7')
    for r in range(16):
        a(f'v_mul_f32 v2, v{TI+r}, v{TS+r}')
        a(f'v_mul_f32 v3, v{TR+r}, v{TS+r}')
        a(f'v_fma_f32 v{TR+r}, v{TR+r}, v{TC+r}, v2')
        a(f'v_fma_f32 v{TI+r}, v{TI+r}, v{TC+r}, -v3')
    for p in range(8):
        a(f'v_cvt_pk_bf16_f32 v{ZR+p}, v{TR+2*p}, v{TR+2*p+1}')
        a(f'v_cvt_pk_bf16_f32 v{ZI+p}, v{TI+2*p}, v{TI+2*p+1}')
    a('s_nop 1')

def gen_stageB(a, data_is_A):
    def m(d, data, const, c):
        return mf(d, data, const, c) if data_is_A else mf(d, const, data, c)
    a(m(TR, ZR, CC, None));     a(m(TI, ZI, CC, None))
    a(m(TR, ZR+4, CC+4, TR));   a(m(TI, ZI+4, CC+4, TI))
    a(m(TR, ZI, SC, TR));       a(m(TI, ZR, NSC, TI))
    a(m(TR, ZI+4, SC+4, TR));   a(m(TI, ZR+4, NSC+4, TI))
    a('s_nop 7'); a('s_nop 7')

def gen_pass1(a, name):
    kernel_begin(a, name)
    L = lambda s: f'{name}_{s}'
    a('s_cmp_ge_u32 s2, 256')
    a(f's_cbranch_scc1 {L("end")}')
    a('s_load_dwordx2 s[4:5], s[0:1], 0')
    a('s_load_dwordx2 s[6:7], s[0:1], 80')
    a('s_load_dwordx2 s[18:19], s[0:1], 104')
    a('v_lshrrev_b32 v1, 6, v0')
    a('s_nop 0')
    a('v_readfirstlane_b32 s28, v1')
    a('v_and_b32 v1, 63, v0')
    a('s_waitcnt lgkmcnt(0)')
    srd(a, 8, 4, 2048*1024*2)
    srd(a, 12, 6, 2048)
    a('s_add_u32 s18, s18, %d' % 0)
    srd(a, 36, 18, 0x2000000)
    a('s_lshl_b32 s30, s2, 14')
    a('s_lshl_b32 s31, s28, 12')
    a('s_add_u32 s30, s30, s31')
    a('v_lshlrev_b32 v6, 4, v1')
    a('s_mov_b32 m0, s31')
    a('s_nop 0')
    for i in range(4):
        a(f'buffer_load_dwordx4 v6, s[8:11], s30 offen offset:{i*1024} lds')
    a('v_lshlrev_b32 v7, 5, v1')
    a('buffer_load_dwordx4 v[128:131], v7, s[12:15], 0 offen')
    a('buffer_load_dwordx4 v[132:135], v7, s[12:15], 0 offen offset:16')
    gen_consts(a, 1)
    gen_twiddle(a, 1)
    a('v_lshrrev_b32 v2, 5, v1')
    a('v_bfe_u32 v3, v1, 2, 2')
    a('v_lshl_add_u32 v2, v2, 2, v3')
    a('v_lshlrev_b32 v2, 6, v2')
    a('v_bfe_u32 v3, v1, 4, 1')
    a('v_lshlrev_b32 v3, 5, v3')
    a('v_and_b32 v4, 3, v1')
    a('v_lshlrev_b32 v4, 3, v4')
    a('v_add3_u32 v8, v2, v3, v4')
    a('v_add_u32 v8, s31, v8')
    a('s_waitcnt vmcnt(2)')
    gen_loads(a, 8, 16*64, 8*64, 2048)
    a('v_lshlrev_b32 v9, 5, v1')
    a('v_add_u32 v9, s31, v9')
    a('ds_read_b128 v[136:139], v9')
    a('ds_read_b128 v[140:143], v9 offset:16')
    a('ds_read_b128 v[144:147], v9 offset:2048')
    a('ds_read_b128 v[148:151], v9 offset:2064')
    a('s_waitcnt lgkmcnt(4)')
    gen_stageA(a)
    a('s_waitcnt vmcnt(0) lgkmcnt(0)')
    a('v_mov_b32 v152, 0'); a('v_mov_b32 v153, 0')
    for i in range(8):
        a(f'v_dot2_f32_bf16 v152, v{136+i}, v{128+i}, v152')
        a(f'v_dot2_f32_bf16 v153, v{144+i}, v{128+i}, v153')
    for ctl in ['row_shr:1 row_mask:0xf', 'row_shr:2 row_mask:0xf', 'row_shr:4 row_mask:0xf', 'row_shr:8 row_mask:0xf', 'row_bcast:15 row_mask:0xa', 'row_bcast:31 row_mask:0xc']:
        a('s_nop 1')
        a(f'v_add_f32_dpp v152, v152, v152 {ctl} bank_mask:0xf')
        a(f'v_add_f32_dpp v153, v153, v153 {ctl} bank_mask:0xf')
    gen_tw_apply(a)
    gen_stageB(a, data_is_A=False)
    for r in (152, 153):
        a(f'v_mul_f32 v{r}, 0xbfb8aa3b, v{r}')
        a(f'v_exp_f32 v{r}, v{r}')
        a('s_nop 0')
        a(f'v_add_f32 v{r}, 1.0, v{r}')
        a(f'v_rcp_f32 v{r}, v{r}')
    a('v_and_b32 v2, 31, v1')
    a('v_lshlrev_b32 v2, 4, v2')
    a('v_lshrrev_b32 v3, 5, v1')
    a('v_lshlrev_b32 v3, 11, v3')
    a('s_lshl_b32 s32, s28, 1')
    a('s_add_u32 s32, s32, 16384')
    a('v_add3_u32 v10, v2, v3, s32')
    for plane, R in ((0, TR), (1, TI)):
        for p in range(8):
            a(f'v_cvt_pk_bf16_f32 v{ZR+p + (0 if plane==0 else 8)}, v{R+2*p}, v{R+2*p+1}')
    for plane in range(2):
        for p in range(8):
            src = ZR + p + 8*plane
            a(f'ds_write_b16 v10, v{src} offset:{512*cidx(2*p) + plane*8}')
            a(f'ds_write_b16_d16_hi v10, v{src} offset:{512*cidx(2*p+1) + plane*8}')
    a('s_lshl_b32 s33, s2, 5')
    a('s_lshl_b32 s34, s28, 3')
    a('s_add_u32 s33, s33, s34')
    a(f's_add_u32 s33, s33, {G_OFF}')
    a('v_mov_b32 v11, s33')
    a('v_cmp_eq_u32 vcc, 63, v1')
    a('s_and_saveexec_b64 s[40:41], vcc')
    a('buffer_store_dwordx2 v[152:153], v11, s[36:39], 0 offen')
    a('s_mov_b64 exec, s[40:41]')
    a('s_waitcnt lgkmcnt(0)')
    a('s_barrier')
    for i in range(4):
        a(f'v_add_u32 v12, {256*i}, v0')
        a(f'v_lshlrev_b32 v13, 4, v12')
        a(f'ds_read_b128 v[{136+4*i}:{139+4*i}], v13 offset:16384')
        if i < 2:
            a(f'v_mov_b32 v14, v12')
            half = 0
        else:
            a(f'v_sub_u32 v14, 1024, v12')
            a(f'v_and_b32 v14, 511, v14')
            half = 1
        a('v_lshrrev_b32 v15, 1, v14')
        a('v_lshlrev_b32 v15, 14, v15')
        a('v_and_b32 v14, 1, v14')
        a('v_lshlrev_b32 v14, 4, v14')
        a(f'v_add3_u32 v{156+i}, v15, v14, {half*32}')
    a('s_lshl_b32 s33, s2, 6')
    a(f's_add_u32 s33, s33, {VB_OFF}')
    for i in range(4):
        a(f's_waitcnt lgkmcnt({3-i})')
        a(f'buffer_store_dwordx4 v[{136+4*i}:{139+4*i}], v{156+i}, s[36:39], s33 offen')
    a.label(L('end'))
    a('s_endpgm')

XS = 8704
def gen_pass2(a, name):
    kernel_begin(a, name)
    L = lambda s: f'{name}_{s}'
    a('s_cmp_ge_u32 s2, 256')
    a(f's_cbranch_scc1 {L("end")}')
    a('s_load_dwordx2 s[18:19], s[0:1], 104')
    a('v_lshrrev_b32 v1, 6, v0')
    a('s_nop 0')
    a('v_readfirstlane_b32 s28, v1')
    a('v_and_b32 v1, 63, v0')
    a('s_waitcnt lgkmcnt(0)')
    srd(a, 36, 18, 0x2000000)
    a('s_lshl_b32 s30, s2, 14')
    a('s_lshl_b32 s31, s28, 12')
    a('s_add_u32 s30, s30, s31')
    a(f's_add_u32 s30, s30, {VB_OFF}')
    a('v_lshlrev_b32 v6, 4, v1')
    a('s_mov_b32 m0, s31')
    a('s_nop 0')
    for i in range(4):
        a(f'buffer_load_dwordx4 v6, s[36:39], s30 offen offset:{i*1024} lds')
    gen_consts(a, 1)
    gen_twiddle(a, 1)
    a('v_lshrrev_b32 v2, 5, v1')
    a('v_bfe_u32 v3, v1, 2, 2')
    a('v_lshl_add_u32 v2, v2, 2, v3')
    a('v_lshlrev_b32 v2, 9, v2')
    a('v_bfe_u32 v3, v1, 4, 1')
    a('v_lshlrev_b32 v3, 2, v3')
    a('v_and_b32 v4, 3, v1')
    a('v_add_u32 v3, v3, v4')
    a('v_lshlrev_b32 v3, 6, v3')
    a('s_lshl_b32 s32, s28, 4')
    a('v_add3_u32 v8, v2, v3, s32')
    a('s_waitcnt vmcnt(0)')
    a('s_barrier')
    gen_loads(a, 8, 16*512, 8*512, 8)
    a('s_waitcnt lgkmcnt(0)')
    gen_stageA(a)
    gen_tw_apply(a)
    gen_stageB(a, data_is_A=True)
    XB = 16384
    a('v_and_b32 v2, 31, v1')
    a('v_lshrrev_b32 v3, 5, v1')
    a('v_mul_u32_u24 v4, 33, v2')
    a('v_lshl_add_u32 v4, v3, 2, v4')
    a('v_lshlrev_b32 v4, 3, v4')
    a(f's_mul_i32 s33, s28, {XS}')
    a(f's_add_u32 s33, s33, {XB}')
    a('v_add_u32 v10, s33, v4')
    for r in range(16):
        a(f'ds_write2_b32 v10, v{TR+r}, v{TI+r} offset0:{2*cidx(r)} offset1:{2*cidx(r)+1}')
    a('v_add_u32 v5, 31, v2')
    a('v_and_b32 v5, 31, v5')
    a('v_mul_u32_u24 v5, 33, v5')
    a('v_add_u32 v5, 32, v5')
    a('v_lshlrev_b32 v5, 3, v5')
    a('v_add_u32 v11, s33, v5')
    a('s_mov_b64 s[40:41], exec')
    a('s_mov_b32 exec_hi, 0')
    a(f'ds_write2_b32 v11, v{TR}, v{TI} offset0:0 offset1:1')
    a('s_mov_b64 exec, s[40:41]')
    a('s_xor_b32 s34, s28, 2')
    a('s_and_b32 s35, s28, 1')
    a('s_or_b32 s35, s35, s2')
    a('s_cmp_eq_u32 s35, 0')
    a('s_cselect_b32 s34, s28, s34')
    a(f's_mul_i32 s34, s34, {XS}')
    a(f's_add_u32 s34, s34, {XB}')
    a('v_sub_u32 v5, 31, v2')
    a('v_mul_u32_u24 v5, 33, v5')
    a('v_lshlrev_b32 v4, 2, v3')
    a('v_sub_u32 v5, v5, v4')
    a('v_add_u32 v5, 5, v5')
    a('v_lshlrev_b32 v5, 3, v5')
    a('v_add_u32 v11, s34, v5')
    a('v_lshlrev_b32 v5, 5, v2')
    a('v_lshl_add_u32 v5, v3, 2, v5')
    a('v_cvt_f32_u32 v5, v5')
    a('v_mul_f32 v5, 0x3a000000, v5')
    a('v_mov_b32 v6, 0x3a000000')
    a('v_mov_b32 v7, 0x3b200000')
    for i in range(16):
        if i > 0:
            a(f'v_add_f32 v5, v5, v{6 if (i&3) else 7}')
        a(f'v_cos_f32 v{TC+i}, v5')
        a(f'v_sin_f32 v{TS+i}, v5')
    a('s_waitcnt lgkmcnt(0)')
    a('s_barrier')
    P = 128
    for r in range(16):
        a(f'ds_read_b64 v[{P+2*r}:{P+2*r+1}], v11 offset:{(27-cidx(r))*8}')
    a('s_lshl_b32 s42, s2, 1')
    a('s_and_b32 s43, s28, 1')
    a('s_add_u32 s42, s42, s43')
    a('s_sub_u32 s43, 1024, s42')
    a('s_cmp_eq_u32 s42, 0')
    a('s_cselect_b32 s43, 512, s43')
    a('s_cmp_ge_u32 s28, 2')
    a('s_cselect_b32 s42, s43, s42')
    a('s_lshl_b32 s42, s42, 12')
    a(f's_add_u32 s42, s42, {YT_OFF}')
    a('v_lshlrev_b32 v12, 6, v2')
    a('v_lshl_add_u32 v12, v3, 4, v12')
    a('s_waitcnt lgkmcnt(0)')
    for r in range(16):
        c_, d_ = P+2*r, P+2*r+1
        a(f'v_sub_f32 v2, v{TR+r}, v{c_}')
        a(f'v_add_f32 v{TR+r}, v{TR+r}, v{c_}')
        a(f'v_add_f32 v{TI+r}, v{TI+r}, v{d_}')
        a(f'v_mul_f32 v2, v2, v{TS+r}')
        a(f'v_fma_f32 v2, v{TI+r}, v{TC+r}, -v2')
        a(f'v_sub_f32 v{TI+r}, v{TR+r}, v2')
        a(f'v_add_f32 v{TR+r}, v{TR+r}, v2')
    for yi, R in ((0, TR), (1, TI)):
        for qp in range(2):
            O = 40 + 4*(yi*2+qp)
            q = 2*qp
            a(f'v_cvt_pk_bf16_f32 v{O}, v{R+4*q}, v{R+4*q+1}')
            a(f'v_cvt_pk_bf16_f32 v{O+1}, v{R+4*q+2}, v{R+4*q+3}')
            a(f'v_cvt_pk_bf16_f32 v{O+2}, v{R+4*q+4}, v{R+4*q+5}')
            a(f'v_cvt_pk_bf16_f32 v{O+3}, v{R+4*q+6}, v{R+4*q+7}')
            a('s_nop 1')
            a(f'v_permlane32_swap_b32 v{O}, v{O+2}')
            a(f'v_permlane32_swap_b32 v{O+1}, v{O+3}')
            a(f'buffer_store_dwordx4 v[{O}:{O+3}], v12, s[36:39], s42 offen offset:{yi*2048 + q*16}')
    a.label(L('end'))
    a('s_endpgm')

if __name__ == '__main__':
    a = Asm()
    hdr = HEADER_COMMENT + f"; @launch kernel=fft1_kernel grid=(256,1,1) block=(256,1,1) lds=32768\n" + \
          f"; @launch kernel=fft2_kernel grid=(256,1,1) block=(256,1,1) lds={16384+4*XS}\n"
    a.raw('.amdgcn_target "amdgcn-amd-amdhsa--gfx950"')
    gen_pass1(a, 'fft1_kernel')
    gen_pass2(a, 'fft2_kernel')
    open('fft.s', 'w').write(hdr + a.text() + kernel_desc('fft1_kernel', 168, 48) + kernel_desc('fft2_kernel', 168, 48))
```

```python
from asmlib import *
import math

class Sched:
    def __init__(self, a):
        self.a = a
    def run(self, mfmas, fillers, start=0, per=None):
        a = self.a
        for ins in fillers.get(-1, []): a(ins)
        for i, m in enumerate(mfmas):
            a(m)
            for ins in fillers.get(i, []): a(ins)

def spread(items, lo, hi):
    d = {}
    n = len(items)
    if n == 0: return d
    span = hi - lo
    for j, it in enumerate(items):
        idx = lo + (j*span)//n
        d.setdefault(idx, []).extend(it if isinstance(it, list) else [it])
    return d

def merge(*ds):
    r = {}
    for d in ds:
        for k, v in d.items():
            r.setdefault(k, []).extend(v)
    return r
```

```python
from gemm import *
import fft as F

H_OFF = 0
VB_OFF = 0x1000000
YT_OFF = 0x1400000
G_OFF = 0x1800000
FH_OFF = 0x1810000
FX_OFF = 0x1811000
EX_OFF = 0x1900000
ST_OFF = 0x4000000
WS_WIN = 0x8000000

S_WAVE, S_W4, S_SLOT, S_SX, S_IDX = 3, 4, 5, 6, 7
SX, SW1, SW2, SWS, SOUT, SDBG, STMP = 8, 12, 16, 20, 24, 28, 32
P_W1, P_B1, P_W2, P_B2, P_GW, P_OUT, P_DBG, P_WS, P_X = 36, 38, 40, 42, 44, 46, 48, 50, 52
S_TM, S_TN, S_WM, S_WN = 56, 57, 58, 59
S_MODE = 54

class VM:
    def __init__(self): self.ops = []
    def issue(self, tag): self.ops.append(tag)
    def wait_for(self, tags):
        last = -1
        for i, t in enumerate(self.ops):
            if t in tags: last = i
        n = len(self.ops) - 1 - last
        if n > 63: n = 63
        return n

def stamp(a, on, sreg):
    if on: a(f's_memrealtime s[{sreg}:{sreg+1}]')

def srd2(a, d, base, nbytes):
    srd(a, d, base, nbytes)

class GemmM:
    def __init__(self, a, name, NT, acc0, X0, W0, X1, W1, vx, vw, wmap, kkw, hhw, NSX, XSZ, NSW, WSZ, NK, sbase, bar_pos):
        self.__dict__.update(locals())
        self.MT = 4
    def acc(self, mt, nt): return self.acc0 + (nt*4 + mt)*4
    def reads(self, kk, X, W):
        it = []
        vx = self.vx[kk]
        def wr(nt):
            reg, imm = self.wmap(nt)
            return [f'ds_read_b64_tr_b16 v[{W+4*nt+2*hh}:{W+4*nt+2*hh+1}], v{reg} offset:{imm + kk*self.kkw + hh*self.hhw}' for hh in range(2)]
        it.append(f'ds_read_b128 v[{X}:{X+3}], v{vx} offset:0')
        it += wr(0)
        for mt in range(1,4):
            it.append(f'ds_read_b128 v[{X+4*mt}:{X+4*mt+3}], v{vx} offset:{mt*2048}')
        for nt in range(1, self.NT): it += wr(nt)
        return it
    def mfmas(self, X, W):
        return [f'v_mfma_f32_16x16x32_bf16 v[{self.acc(mt,nt)}:{self.acc(mt,nt)+3}], v[{W+4*nt}:{W+4*nt+3}], v[{X+4*mt}:{X+4*mt+3}], v[{self.acc(mt,nt)}:{self.acc(mt,nt)+3}]'
                for nt in range(self.NT) for mt in range(4)]
    def init_state(self):
        a, sb = self.a, self.sbase
        a(f's_mov_b32 s{sb}, 0')
        a(f's_mov_b32 s{sb+1}, 0')
        a(f's_mov_b32 s{sb+2}, {self.XSZ}')
        a(f's_mov_b32 s{sb+3}, {-self.XSZ*(self.NSX-1) & 0xffffffff}')
        a(f's_mov_b32 s{sb+4}, {self.WSZ}')
        a(f's_mov_b32 s{sb+5}, {-self.WSZ*(self.NSW-1) & 0xffffffff}')
    def adv(self):
        sb = self.sbase
        r = [f's_add_u32 s{sb}, s{sb}, {self.XSZ}', f's_cmp_eq_u32 s{sb}, {self.XSZ*self.NSX}',
             f's_cselect_b32 s{sb+6}, s{sb+3}, s{sb+2}', f's_cselect_b32 s{sb}, 0, s{sb}',
             f's_add_u32 s{sb+1}, s{sb+1}, {self.WSZ}', f's_cmp_eq_u32 s{sb+1}, {self.WSZ*self.NSW}',
             f's_cselect_b32 s{sb+7}, s{sb+5}, s{sb+4}', f's_cselect_b32 s{sb+1}, 0, s{sb+1}']
        r += [f'v_add_u32 v{v}, s{sb+6}, v{v}' for v in self.vx]
        r += [f'v_add_u32 v{v}, s{sb+7}, v{v}' for v in self.vw]
        return r
    def body(self, nxt, bar=True, extraA=None):
        a = self.a
        n = 4*self.NT
        sc = Sched(a)
        its = getattr(self, 'its', None)
        if its:
            a('s_memtime s[98:99]')
            a('s_memrealtime s[100:101]')
        a('s_waitcnt lgkmcnt(0)')
        if its:
            a('s_mov_b32 m0, s73')
            a('s_add_u32 s73, s73, 1')
            a(f'v_writelane_b32 v{its}, s98, m0')
            a(f'v_writelane_b32 v{its+1}, s100, m0')
        bp = self.bar_pos
        fa = spread(self.reads(1, self.X1, self.W1), 0, max(1, bp-3))
        adv = self.adv()
        fa = merge(fa, {bp-3: adv[:8], bp-2: adv[8:]})
        if bar:
            fa = merge(fa, {bp: ['s_waitcnt lgkmcnt(0)', 's_barrier']})
        else:
            fa = merge(fa, {n-1: ['s_waitcnt lgkmcnt(0)']})
        if extraA: fa = merge(fa, extraA)
        sc.run(self.mfmas(self.X0, self.W0), fa)
        fb = {}
        if nxt:
            fb = spread(self.reads(0, self.X0, self.W0), 0, max(1, n-8))
        sc.run(self.mfmas(self.X1, self.W1), fb)

def gen_ffn(a, name, stampon=False, itstamp=False, pfw2=True, rotx=2, g1_nsw=4, force_slow=False):
    L = lambda s: f'{name}_{s}'
    kernel_begin(a, name)
    stamp(a, stampon, 80)
    a('s_cmp_ge_u32 s2, 256')
    a(f's_cbranch_scc1 {L("end")}')
    a(f's_load_dwordx8 s[{P_W1}:{P_W1+7}], s[0:1], 48')
    a(f's_load_dwordx8 s[{P_GW}:{P_GW+7}], s[0:1], 80')
    a(f's_load_dwordx2 s[{P_X}:{P_X+1}], s[0:1], 0')
    a('s_getreg_b32 s60, hwreg(HW_REG_XCC_ID)')
    a('v_lshrrev_b32 v1, 6, v0')
    a('v_and_b32 v2, 63, v0')
    a(f'v_readfirstlane_b32 s{S_WAVE}, v1')
    a('s_and_b32 s60, s60, 7')
    a('s_waitcnt lgkmcnt(0)')
    srd(a, SX, P_X, 2048*1024*2)
    srd(a, SW1, P_W1, 1024*3584*2)
    srd(a, SW2, P_W2, 3584*1024*2)
    srd(a, SWS, P_WS, WS_WIN)
    srd(a, SOUT, P_OUT, 2048*1024*2)
    srd(a, SDBG, P_DBG, 256)
    a(f's_and_b32 s{S_W4}, s{S_WAVE}, 3')
    SLOT_LDS = 160*1024 - 64
    a(f's_cmp_lg_u32 s{S_WAVE}, 4')
    a(f's_cbranch_scc1 {L("noticket")}')
    a('s_mov_b64 s[62:63], exec')
    a('s_mov_b64 exec, 1')
    a('v_mov_b32 v3, 1')
    a('s_lshl_b32 s61, s60, 5')
    a('v_mov_b32 v4, s61')
    a(f'buffer_atomic_add v3, v4, s[{SDBG}:{SDBG+3}], 0 offen sc0')
    a('s_waitcnt vmcnt(0)')
    a('v_readfirstlane_b32 s61, v3')
    a('s_cmp_lt_u32 s61, 32')
    a(f's_cbranch_scc1 {L("tick_ok")}')
    a('v_mov_b32 v3, 1')
    a('v_mov_b32 v4, 8')
    a(f'buffer_atomic_add v3, v4, s[{SDBG}:{SDBG+3}], 0 offen sc0')
    a('s_waitcnt vmcnt(0)')
    a('v_readfirstlane_b32 s64, v3')
    a('s_mov_b64 exec, 0xff')
    a('v_lshlrev_b32 v4, 5, v2')
    a('s_mov_b32 s76, 200000')
    a.label(L('ovf_poll'))
    a('s_sub_u32 s76, s76, 1')
    a('s_cmp_eq_u32 s76, 0')
    a(f's_cbranch_scc1 {L("ovf_done")}')
    a(f'buffer_load_dword v3, v4, s[{SDBG}:{SDBG+3}], 0 offen sc1')
    a('s_waitcnt vmcnt(0)')
    a('s_mov_b32 s65, 0')
    for j in range(8):
        a(f'v_readlane_b32 s{66+j}, v3, {j}')
    a('s_nop 3')
    for j in range(8):
        a(f's_add_u32 s65, s65, s{66+j}')
    a('s_cmp_lt_u32 s65, 256')
    a(f's_cbranch_scc0 {L("ovf_done")}')
    a('s_sleep 4')
    a(f's_branch {L("ovf_poll")}')
    a.label(L('ovf_done'))
    a('s_mov_b32 s60, 0')
    a('s_mov_b32 s61, 0')
    for j in range(8):
        lab = L(f'ovf_n{j}')
        a(f's_min_u32 s74, s{66+j}, 32')
        a('s_sub_u32 s75, 32, s74')
        a('s_cmp_lt_u32 s64, s75')
        a(f's_cbranch_scc0 {lab}')
        a(f's_mov_b32 s60, {j}')
        a('s_add_u32 s61, s74, s64')
        a(f's_branch {L("tick_ok")}')
        a.label(lab)
        a('s_sub_u32 s64, s64, s75')
    a.label(L('tick_ok'))
    a('s_mov_b64 exec, 1')
    a('s_lshl_b32 s60, s60, 5')
    a('s_add_u32 s60, s60, s61')
    a('v_mov_b32 v3, s60')
    a(f'v_mov_b32 v4, {SLOT_LDS}')
    a('ds_write_b32 v4, v3')
    a('s_waitcnt lgkmcnt(0)')
    a('s_mov_b64 exec, s[62:63]')
    a.label(L('noticket'))
    a('s_barrier')
    a(f'v_mov_b32 v4, {SLOT_LDS}')
    a('ds_read_b32 v3, v4')
    a('s_waitcnt lgkmcnt(0)')
    a(f'v_readfirstlane_b32 s{S_SLOT}, v3')
    stamp(a, stampon, 82)
    a(f's_lshr_b32 s{S_SX}, s{S_SLOT}, 5')
    a(f's_and_b32 s{S_IDX}, s{S_SLOT}, 31')
    a(f's_and_b32 s60, s{S_IDX}, 1')
    a(f's_lshl_b32 s{S_TM}, s{S_SX}, 1')
    a(f's_add_u32 s{S_TM}, s{S_TM}, s60')
    a(f's_lshr_b32 s{S_TN}, s{S_IDX}, 1')
    a(f's_and_b32 s{S_WM}, s{S_W4}, 1')
    a(f's_lshr_b32 s{S_WN}, s{S_W4}, 1')
    a(f's_cmp_ge_u32 s{S_WAVE}, 4')
    a(f's_cbranch_scc1 {L("aux")}')

    G1_XB, G1_XSZ, G1_NSX = 0, 16384, 3
    G1_WB, G1_WSZ, G1_NSW = 49152, 28672, g1_nsw
    X0, W0, X1, W1 = 16, 32, 64, 80
    ACC = 128
    g1 = GemmM(a, 'g1', 7, ACC, X0, W0, X1, W1, [4, 12], [5, 6],
               lambda nt: (5 if nt % 2 == 0 else 6, nt*32), 32*448, 4*448, G1_NSX, G1_XSZ, G1_NSW, G1_WSZ, 16, 64, 20)
    srd(a, STMP, P_B1, 3584*2)
    a('v_lshrrev_b32 v7, 4, v2')
    a(f's_mul_i32 s60, s{S_TN}, 448')
    a(f's_mul_i32 s61, s{S_WN}, 224')
    a('s_add_u32 s60, s60, s61')
    a('v_lshlrev_b32 v7, 3, v7')
    a('v_add_u32 v7, s60, v7')
    for nt in range(7):
        a(f'buffer_load_dwordx2 v[{X1+2*nt}:{X1+2*nt+1}], v7, s[{STMP}:{STMP+3}], 0 offen offset:{nt*32}')
    a('v_and_b32 v3, 15, v2')
    a('v_lshrrev_b32 v7, 4, v2')
    a('v_and_b32 v15, 7, v2')
    a('v_xor_b32 v15, v15, v7')
    a('v_lshlrev_b32 v15, 4, v15')
    a(f's_lshl_b32 s60, s{S_WM}, 13')
    a('v_lshlrev_b32 v4, 7, v3')
    a('v_add_u32 v4, v4, v15')
    a('v_add_u32 v4, s60, v4')
    a('v_xor_b32 v12, 64, v4')
    a('v_bfe_u32 v15, v2, 2, 2')
    a('v_lshl_add_u32 v15, v7, 3, v15')
    a('v_mul_u32_u24 v15, 448, v15')
    a('v_and_b32 v5, 3, v2')
    a('v_lshl_add_u32 v15, v5, 3, v15')
    a('v_and_b32 v6, 1, v7')
    a('v_lshlrev_b32 v6, 5, v6')
    a(f's_mul_i32 s60, s{S_WN}, 224')
    a(f's_add_u32 s60, s60, {G1_WB}')
    a('v_add_u32 v15, s60, v15')
    a('v_add_u32 v13, v15, v6')
    a('v_sub_u32 v14, v15, v6')
    a(f's_cmp_eq_u32 s{S_WN}, 0')
    a('s_cselect_b64 vcc, -1, 0')
    a('s_nop 1')
    a('v_cndmask_b32 v5, v14, v13, vcc')
    a('v_cndmask_b32 v6, v13, v14, vcc')
    a('s_waitcnt vmcnt(0)')
    for nt in range(7):
        r0 = X1+2*nt
        A0 = g1.acc(0,nt)
        a(f'v_lshlrev_b32 v{A0}, 16, v{r0}')
        a(f'v_and_b32 v{A0+1}, 0xffff0000, v{r0}')
        a(f'v_lshlrev_b32 v{A0+2}, 16, v{r0+1}')
        a(f'v_and_b32 v{A0+3}, 0xffff0000, v{r0+1}')
        for mt in range(1,4):
            for r in range(4):
                a(f'v_mov_b32 v{g1.acc(mt,nt)+r}, v{A0+r}')
    g1.init_state()
    if itstamp:
        g1.its = 250
        a('s_mov_b32 s73, 0')
    a('s_barrier')
    stamp(a, stampon, 84)
    for ins in g1.reads(0, X0, W0): a(ins)
    a('s_mov_b32 s72, 15')
    a.label(L('g1loop'))
    g1.body(True)
    a('s_sub_u32 s72, s72, 1')
    a('s_cmp_lg_u32 s72, 0')
    a(f's_cbranch_scc1 {L("g1loop")}')
    a('v_mov_b32 v8, 4')
    a(f'buffer_load_dwordx2 v[10:11], v8, s[{SDBG}:{SDBG+3}], 0 offen sc1')
    g1.body(False, bar=True)
    stamp(a, stampon, 86)
    def dump_its(reg, off):
        a(f's_lshl_b32 s60, s{S_SLOT}, 9')
        a(f's_add_u32 s60, s60, {ST_OFF + off}')
        a('v_lshlrev_b32 v3, 2, v2')
        a(f's_cmp_lg_u32 s{S_WAVE}, 0')
        lab = L(f'dumpskip{reg}')
        a(f's_cbranch_scc1 {lab}')
        a(f'buffer_store_dword v{reg}, v3, s[{SWS}:{SWS+3}], s60 offen')
        a(f'buffer_store_dword v{reg+1}, v3, s[{SWS}:{SWS+3}], s60 offen offset:256')
        a.label(lab)
    if itstamp: dump_its(250, 0x10000)
    a('s_mov_b32 s76, 200000')
    a.label(L('modechk'))
    a('s_sub_u32 s76, s76, 1')
    a('s_cmp_eq_u32 s76, 0')
    a(f's_cbranch_scc1 {L("modeok")}')
    a('s_waitcnt vmcnt(0)')
    a('v_readfirstlane_b32 s60, v10')
    a('v_readfirstlane_b32 s61, v11')
    a('s_cmp_eq_u32 s60, 256')
    a(f's_cbranch_scc1 {L("modeok")}')
    a('s_sleep 2')
    a(f'buffer_load_dwordx2 v[10:11], v8, s[{SDBG}:{SDBG+3}], 0 offen sc1')
    a(f's_branch {L("modechk")}')
    a.label(L('modeok'))
    a(f's_mov_b32 s{S_MODE}, ' + ('1' if force_slow else 's61'))
    a('v_and_b32 v3, 15, v2')
    a('v_lshrrev_b32 v7, 4, v2')
    a(f's_lshl_b32 s60, s{S_TM}, 7')
    a(f's_lshl_b32 s61, s{S_WM}, 6')
    a('s_add_u32 s60, s60, s61')
    a('v_add_u32 v3, s60, v3')
    a('v_mul_u32_u24 v3, 7168, v3')
    a(f's_mul_i32 s60, s{S_TN}, 448')
    a(f's_mul_i32 s61, s{S_WN}, 224')
    a('s_add_u32 s60, s60, s61')
    a('v_add_u32 v3, s60, v3')
    a('v_and_b32 v8, 1, v7')
    a('v_lshrrev_b32 v9, 1, v7')
    a('v_lshlrev_b32 v9, 4, v9')
    a('v_lshlrev_b32 v10, 5, v8')
    a('v_add3_u32 v10, v3, v10, v9')
    a('v_mul_u32_u24 v8, 0x1c000, v8')
    a('v_add3_u32 v11, v3, v8, v9')
    T = 16
    grp = 0
    stores = []
    def emit_pair(P, Q, addr, soff, off):
        nonlocal grp
        R = T + 4*grp; grp += 1
        for base in (P, Q):
            for r in range(4):
                a(f'v_max_f32 v{76+r}, 0, v{base+r}')
            for r in range(4):
                a(f'v_mul_f32 v{base+r}, v{base+r}, v{76+r}')
        a(f'v_cvt_pk_bf16_f32 v{R}, v{P}, v{P+1}')
        a(f'v_cvt_pk_bf16_f32 v{R+1}, v{P+2}, v{P+3}')
        a(f'v_cvt_pk_bf16_f32 v{R+2}, v{Q}, v{Q+1}')
        a(f'v_cvt_pk_bf16_f32 v{R+3}, v{Q+2}, v{Q+3}')
        a('s_nop 1')
        a(f'v_permlane16_swap_b32 v{R}, v{R+2}')
        a(f'v_permlane16_swap_b32 v{R+1}, v{R+3}')
        a(f's_mov_b32 s60, {soff}')
        a(f's_cmp_eq_u32 s{S_MODE}, 0')
        lab = L(f'st{grp}'); lab2 = L(f'st{grp}e')
        a(f's_cbranch_scc0 {lab}')
        a(f'buffer_store_dwordx4 v[{R}:{R+3}], v{addr}, s[{SWS}:{SWS+3}], s60 offen offset:{off}')
        a(f's_branch {lab2}')
        a.label(lab)
        a(f'buffer_store_dwordx4 v[{R}:{R+3}], v{addr}, s[{SWS}:{SWS+3}], s60 offen offset:{off} sc1')
        a.label(lab2)
    for mt in range(4):
        for p in range(3):
            emit_pair(g1.acc(mt,2*p), g1.acc(mt,2*p+1), 10, mt*16*7168, p*64)
    for mp in range(2):
        emit_pair(g1.acc(2*mp,6), g1.acc(2*mp+1,6), 11, mp*32*7168, 192)
    G2_XB, G2_XSZ, G2_NSX = 0, 16384, 3
    G2_WB, G2_WSZ, G2_NSW = 49152, 16384, 6
    YL = 147456
    S_KH, S_N2 = 74, 75
    a(f's_bfe_u32 s{S_KH}, s{S_IDX}, 0x10001')
    a(f's_lshr_b32 s{S_N2}, s{S_IDX}, 2')
    X0b, W0b, X1b, W1b = 128, 144, 160, 176
    ACC2 = 192
    g2 = GemmM(a, 'g2', 4, ACC2, X0b, W0b, X1b, W1b, [4, 12], [5, 6, 13, 14],
               lambda nt: ([5, 6, 13, 14][nt], 0), 32*256, 4*256, G2_NSX, G2_XSZ, G2_NSW, G2_WSZ, 28, 64, 11)
    a('v_and_b32 v3, 15, v2')
    a('v_lshrrev_b32 v7, 4, v2')
    a('v_and_b32 v15, 7, v2')
    a('v_xor_b32 v15, v15, v7')
    a('v_lshlrev_b32 v15, 4, v15')
    a(f's_lshl_b32 s60, s{S_WM}, 13')
    a('v_lshlrev_b32 v4, 7, v3')
    a('v_add_u32 v4, v4, v15')
    a('v_add_u32 v4, s60, v4')
    a('v_xor_b32 v12, 64, v4')
    a('v_bfe_u32 v15, v2, 2, 2')
    a('v_lshl_add_u32 v9, v7, 3, v15')
    a('v_lshlrev_b32 v9, 8, v9')
    a('v_and_b32 v8, 1, v7')
    a('v_lshl_or_b32 v15, v8, 2, v15')
    a(f's_lshl_b32 s60, s{S_WN}, 2')
    a('v_xor_b32 v15, s60, v15')
    a('v_lshlrev_b32 v15, 5, v15')
    a('v_and_b32 v8, 3, v2')
    a('v_lshlrev_b32 v8, 3, v8')
    a('v_add3_u32 v5, v9, v15, v8')
    a(f'v_add_u32 v5, {G2_WB}, v5')
    a('v_xor_b32 v6, 32, v5')
    a('v_xor_b32 v13, 64, v5')
    a('v_xor_b32 v14, 96, v5')
    srd(a, STMP, P_B2, 2048)
    a(f's_lshl_b32 s60, s{S_N2}, 8')
    a(f's_lshl_b32 s61, s{S_WN}, 7')
    a('s_add_u32 s60, s60, s61')
    a(f's_lshl_b32 s61, s{S_KH}, 6')
    a('s_add_u32 s60, s60, s61')
    a('v_lshlrev_b32 v8, 3, v7')
    a('v_add_u32 v8, s60, v8')
    BT = 72
    for j in range(2):
        a(f'buffer_load_dwordx2 v[{BT+2*j}:{BT+2*j+1}], v8, s[{STMP}:{STMP+3}], 0 offen offset:{j*32}')
    GR = 80
    a(f's_lshl_b32 s60, s{S_TM}, 7')
    a(f's_lshl_b32 s61, s{S_WM}, 6')
    a('s_add_u32 s60, s60, s61')
    a('v_add_u32 v9, s60, v3')
    a('v_mov_b32 v88, v9')
    a('v_lshlrev_b32 v9, 2, v9')
    a(f's_mov_b32 s60, {G_OFF}')
    for mt in range(4):
        a(f'buffer_load_dword v{GR+mt}, v9, s[{SWS}:{SWS+3}], s60 offen offset:{mt*64} sc1')
    a('s_waitcnt vmcnt(0)')
    a('s_barrier')
    stamp(a, stampon, 88)
    for khv in range(2):
        if khv == 0:
            a(f's_cmp_eq_u32 s{S_KH}, 0')
            a(f's_cbranch_scc0 {L("ini1")}')
        else:
            a.label(L('ini1'))
        for nt in range(4):
            A0 = g2.acc(0, nt)
            if nt // 2 == khv:
                r0 = BT + 2*(nt & 1)
                a(f'v_lshlrev_b32 v{A0}, 16, v{r0}')
                a(f'v_and_b32 v{A0+1}, 0xffff0000, v{r0}')
                a(f'v_lshlrev_b32 v{A0+2}, 16, v{r0+1}')
                a(f'v_and_b32 v{A0+3}, 0xffff0000, v{r0+1}')
                for mt in range(1,4):
                    for r in range(4):
                        a(f'v_mov_b32 v{g2.acc(mt,nt)+r}, v{A0+r}')
            else:
                for mt in range(4):
                    for r in range(4):
                        a(f'v_mov_b32 v{g2.acc(mt,nt)+r}, 0')
        if khv == 0:
            a(f's_branch {L("ini2")}')
    a.label(L('ini2'))
    g2.init_state()
    if itstamp:
        g2.its = 90
        a('s_mov_b32 s73, 0')
    a('s_barrier')
    a('s_barrier')
    stamp(a, stampon, 90)
    for ins in g2.reads(0, X0b, W0b): a(ins)
    a('s_mov_b32 s72, 27')
    a.label(L('g2loop'))
    g2.body(True)
    a('s_sub_u32 s72, s72, 1')
    a('s_cmp_lg_u32 s72, 0')
    a(f's_cbranch_scc1 {L("g2loop")}')
    g2.body(False, bar=False)
    stamp(a, stampon, 92)
    if itstamp: dump_its(90, 0x40000)
    a('s_nop 7')
    a(f's_xor_b32 s60, s{S_SLOT}, 2')
    a('s_lshl_b32 s60, s60, 15')
    a(f's_lshl_b32 s61, s{S_W4}, 13')
    a('s_add_u32 s60, s60, s61')
    a(f's_add_u32 s60, s60, {EX_OFF}')
    a('v_lshlrev_b32 v8, 4, v2')
    for khv in range(2):
        for mode in range(2):
            lab = L(f'ex{khv}{mode}')
            a.label(lab) if (khv, mode) != (0, 0) else None
            if (khv, mode) == (0, 0):
                a(f's_lshl_b32 s61, s{S_KH}, 1')
                a(f's_cmp_lg_u32 s{S_MODE}, 0')
                a('s_cselect_b32 s62, 1, 0')
                a('s_add_u32 s61, s61, s62')
                a('s_cmp_eq_u32 s61, 1'); a(f's_cbranch_scc1 {L("ex01")}')
                a('s_cmp_eq_u32 s61, 2'); a(f's_cbranch_scc1 {L("ex10")}')
                a('s_cmp_eq_u32 s61, 3'); a(f's_cbranch_scc1 {L("ex11")}')
            for i in range(8):
                nt = 2*(1-khv) + (i >> 2); mt = i & 3
                A0 = g2.acc(mt, nt)
                a(f's_add_u32 s62, s60, {i*1024}')
                a(f'buffer_store_dwordx4 v[{A0}:{A0+3}], v8, s[{SWS}:{SWS+3}], s62 offen' + (' sc1' if mode else ''))
            a(f's_branch {L("exdone")}')
    a.label(L('exdone'))
    a('v_lshrrev_b32 v7, 4, v2')
    a('v_bfe_u32 v15, v2, 2, 2')
    a('v_lshl_add_u32 v15, v7, 2, v15')
    a(f's_lshl_b32 s61, s{S_WN}, 5')
    a('v_add_u32 v15, s61, v15')
    a('v_lshlrev_b32 v15, 8, v15')
    a('v_and_b32 v3, 3, v2')
    a('v_lshlrev_b32 v3, 3, v3')
    a(f's_lshl_b32 s61, s{S_WM}, 7')
    a(f's_add_u32 s61, s61, {YL}')
    a('v_add3_u32 v15, v15, v3, s61')
    YR = 16
    for j in range(2):
        for mt in range(4):
            i = j*4+mt
            a(f'ds_read_b64_tr_b16 v[{YR+2*i}:{YR+2*i+1}], v15 offset:{j*4096 + mt*32}')
    for mt in range(4):
        a(f'v_sub_f32 v{GR+4+mt}, 1.0, v{GR+mt}')
        a(f'v_mul_f32 v{GR+mt}, 0.5, v{GR+mt}')
    a('v_lshlrev_b32 v9, 11, v88')
    a(f's_lshl_b32 s61, s{S_N2}, 8')
    a(f's_lshl_b32 s62, s{S_WN}, 7')
    a('s_add_u32 s61, s61, s62')
    a(f's_lshl_b32 s62, s{S_KH}, 6')
    a('s_add_u32 s61, s61, s62')
    a('v_and_b32 v10, 1, v7')
    a('v_lshlrev_b32 v10, 5, v10')
    a('v_lshrrev_b32 v11, 1, v7')
    a('v_lshlrev_b32 v11, 4, v11')
    a('v_add3_u32 v10, v10, v11, s61')
    a('v_add_u32 v9, v9, v10')
    a('s_waitcnt vmcnt(0)')
    a('s_barrier')
    a('s_barrier')
    stamp(a, stampon, 94)
    a(f's_lshl_b32 s60, s{S_SLOT}, 15')
    a(f's_lshl_b32 s61, s{S_W4}, 13')
    a('s_add_u32 s60, s60, s61')
    a(f's_add_u32 s60, s60, {EX_OFF}')
    RX = 96
    for i in range(8):
        a(f's_add_u32 s62, s60, {i*1024}')
        a(f'buffer_load_dwordx4 v[{RX+4*i}:{RX+4*i+3}], v8, s[{SWS}:{SWS+3}], s62 offen sc1')
    K0 = 128
    for khv in range(2):
        if khv == 0:
            a(f's_cmp_eq_u32 s{S_KH}, 0')
            a(f's_cbranch_scc0 {L("kp1")}')
        else:
            a.label(L('kp1'))
        for i in range(8):
            nt = 2*khv + (i >> 2); mt = i & 3
            for r in range(4):
                a(f'v_mov_b32 v{K0+4*i+r}, v{g2.acc(mt,nt)+r}')
        if khv == 0: a(f's_branch {L("kp2")}')
    a.label(L('kp2'))
    a('s_waitcnt lgkmcnt(0)')
    for mt in range(4):
        a(f's_waitcnt vmcnt({max(0, 3-mt) if False else 0})') if mt == 0 else None
        for j in range(2):
            i = j*4 + mt
            A = K0 + 4*i
            y0, y1 = YR+2*i, YR+2*i+1
            for r in range(4):
                a(f'v_add_f32 v{A+r}, v{A+r}, v{RX+4*i+r}')
            a(f'v_lshlrev_b32 v32, 16, v{y0}')
            a(f'v_and_b32 v33, 0xffff0000, v{y0}')
            a(f'v_lshlrev_b32 v34, 16, v{y1}')
            a(f'v_and_b32 v35, 0xffff0000, v{y1}')
            for r in range(4):
                a(f'v_mul_f32 v{A+r}, v{A+r}, v{GR+4+mt}')
            for r in range(4):
                a(f'v_fma_f32 v{A+r}, v{32+r}, v{GR+mt}, v{A+r}')
        R = 40 + 4*mt
        P, Q = K0 + 4*mt, K0 + 4*(4+mt)
        a(f'v_cvt_pk_bf16_f32 v{R}, v{P}, v{P+1}')
        a(f'v_cvt_pk_bf16_f32 v{R+1}, v{P+2}, v{P+3}')
        a(f'v_cvt_pk_bf16_f32 v{R+2}, v{Q}, v{Q+1}')
        a(f'v_cvt_pk_bf16_f32 v{R+3}, v{Q+2}, v{Q+3}')
        a('s_nop 1')
        a(f'v_permlane16_swap_b32 v{R}, v{R+2}')
        a(f'v_permlane16_swap_b32 v{R+1}, v{R+3}')
        a(f's_mov_b32 s60, {mt*16*2048}')
        a(f'buffer_store_dwordx4 v[{R}:{R+3}], v9, s[{SOUT}:{SOUT+3}], s60 offen')
    if stampon:
        a('s_waitcnt vmcnt(0)')
        stamp(a, True, 96)
        a('s_waitcnt lgkmcnt(0)')
        for i in range(9):
            a(f'v_mov_b32 v{16+i}, s{80+2*i}')
        for i in range(9, 12): a(f'v_mov_b32 v{16+i}, 0')
        a(f's_lshl_b32 s60, s{S_SLOT}, 6')
        a(f's_add_u32 s60, s60, {ST_OFF}')
        a('v_mov_b32 v30, s60')
        a('v_cmp_eq_u32 vcc, 0, v0')
        a('s_and_saveexec_b64 s[62:63], vcc')
        a(f's_cbranch_execz {L("end")}')
        for i in range(3):
            a(f'buffer_store_dwordx4 v[{16+4*i}:{19+4*i}], v30, s[{SWS}:{SWS+3}], 0 offen offset:{16*i}')
    a('s_endpgm')

    a.label(L('aux'))
    vm = VM()
    VX = [8,9,10,11]; VW = [12,13,14,15,16,17,18]
    a('v_lshrrev_b32 v3, 3, v2')
    a('v_and_b32 v4, 7, v2')
    a('v_xor_b32 v4, v4, v3')
    a('v_lshlrev_b32 v4, 4, v4')
    a('v_lshlrev_b32 v3, 11, v3')
    a('v_add_u32 v3, v3, v4')
    a(f's_lshl_b32 s60, s{S_TM}, 18')
    a(f's_lshl_b32 s61, s{S_W4}, 16')
    a('s_add_u32 s60, s60, s61')
    for i in range(4):
        a(f's_add_u32 s61, s60, {i*8*2048 - i*1024}')
        a(f'v_add_u32 v{VX[i]}, s61, v3')
    a(f's_mul_i32 s60, s{S_W4}, 448')
    a(f's_mul_i32 s61, s{S_TN}, 448')
    for i in range(7):
        a(f's_add_u32 s62, s60, {i*64}')
        a('v_add_u32 v3, s62, v2')
        a('v_mul_u32_u24 v4, 2341, v3')
        a('v_lshrrev_b32 v4, 16, v4')
        a('v_mul_u32_u24 v5, 28, v4')
        a('v_sub_u32 v5, v3, v5')
        a('v_bfe_u32 v6, v4, 3, 1')
        a('v_lshlrev_b32 v6, 1, v6')
        a('v_xor_b32 v5, v5, v6')
        a('v_lshlrev_b32 v5, 4, v5')
        a('v_mul_u32_u24 v4, 7168, v4')
        a('v_add_u32 v4, v4, v5')
        a(f's_sub_u32 s62, s61, {(i&3)*1024}')
        a(f'v_add_u32 v{VW[i]}, s62, v4')
    a(f's_mul_i32 s64, s{S_SX}, {rotx}')
    a(f's_lshl_b32 s65, s{S_W4}, 12')
    a(f's_mul_i32 s66, s{S_W4}, 7168')
    a(f's_add_u32 s66, s66, {G1_WB}')
    def g1_x(j):
        a(f's_add_u32 s67, s64, {j}')
        a('s_and_b32 s67, s67, 15')
        a('s_lshl_b32 s67, s67, 7')
        a(f's_add_u32 m0, s65, {G1_XB + (j % G1_NSX)*G1_XSZ}')
        a('s_nop 0')
        for i in range(4):
            a(f'buffer_load_dwordx4 v{VX[i]}, s[{SX}:{SX+3}], s67 offen offset:{i*1024} lds'); vm.issue(('x1', j))
    def g1_w(j):
        a(f's_add_u32 s67, s64, {j}')
        a('s_and_b32 s67, s67, 15')
        a(f's_mul_i32 s67, s67, {64*7168}')
        for i in range(7):
            if i in (0, 4):
                a(f's_add_u32 m0, s66, {(j % G1_NSW)*G1_WSZ + (4096 if i == 4 else 0)}')
                a('s_nop 0')
            a(f'buffer_load_dwordx4 v{VW[i]}, s[{SW1}:{SW1+3}], s67 offen offset:{(i&3)*1024} lds'); vm.issue(('w1', j))
    assert G1_NSW <= 4
    a(f's_and_b32 s67, s{S_IDX}, 1')
    a(f's_bfe_u32 s68, s{S_IDX}, 0x10001')
    a(f's_lshl_b32 s69, s{S_SX}, 5')
    a('s_lshl_b32 s70, s67, 4')
    a('s_add_u32 s69, s69, s70')
    a('s_lshl_b32 s70, s68, 3')
    a('s_add_u32 s70, s69, s70')
    a('v_add_u32 v20, s70, v2')
    a('v_lshlrev_b32 v20, 2, v20')
    a(f'v_add_u32 v20, {FH_OFF}, v20')
    a(f's_xor_b32 s70, s{S_SLOT}, 2')
    a('s_lshl_b32 s70, s70, 2')
    a(f's_add_u32 s70, s70, {FX_OFF}')
    a('v_writelane_b32 v20, s70, 8')
    a(f's_add_u32 s70, s69, s{S_TN}')
    a('s_lshl_b32 s70, s70, 2')
    a(f's_add_u32 s70, s70, {FH_OFF}')
    a('v_writelane_b32 v20, s70, 9')
    a(f's_lshl_b32 s70, s{S_SLOT}, 2')
    a(f's_add_u32 s70, s70, {FX_OFF}')
    a('v_writelane_b32 v20, s70, 10')
    a('v_mov_b32 v21, 0')
    a(f's_cmp_lg_u32 s{S_WAVE}, 4')
    a(f's_cbranch_scc1 {L("nocap")}')
    a('s_mov_b64 exec, 0x7ff')
    a(f'buffer_load_dword v21, v20, s[{SWS}:{SWS+3}], 0 offen sc1')
    a('s_mov_b64 exec, -1')
    a.label(L('nocap'))
    g1_x(0); g1_w(0); g1_x(1); g1_w(1); g1_x(2); g1_w(2)
    if G1_NSW == 4:
        pass
    a(f's_waitcnt vmcnt({vm.wait_for([("x1",0),("w1",0)])})')
    a('s_barrier')
    a(f's_cmp_lg_u32 s{S_WAVE}, 4')
    a(f's_cbranch_scc1 {L("nocap2")}')
    a('v_add_u32 v21, 1, v21')
    a('s_mov_b64 exec, 1')
    a('v_mov_b32 v22, 1')
    a('v_mov_b32 v23, 4')
    a(f'buffer_atomic_add v22, v23, s[{SDBG}:{SDBG+3}], 0 offen')
    a('s_mov_b64 exec, -1')
    a.label(L('nocap2'))
    if G1_NSW == 4: g1_w(3)
    PFV = 24
    for s in range(16):
        if s < 15:
            a(f's_waitcnt vmcnt({vm.wait_for([("x1",s+1),("w1",s+1)])})')
        a('s_barrier')
        if s + G1_NSX < 16: g1_x(s + G1_NSX)
        if s + G1_NSW < 16: g1_w(s + G1_NSW)
        if pfw2 and s == 5:
            a(f's_mul_i32 s67, s{S_SLOT}, 28672')
            a(f's_lshl_b32 s68, s{S_W4}, 10')
            a('s_add_u32 s67, s67, s68')
            a('v_lshlrev_b32 v3, 4, v2')
            for i in range(7):
                a(f's_add_u32 s68, s67, {i*4096}')
                a(f'buffer_load_dwordx4 v[{PFV+4*i}:{PFV+4*i+3}], v3, s[{SW2}:{SW2+3}], s68 offen'); vm.issue(('pf', 0))
    a(f's_bfe_u32 s{S_KH}, s{S_IDX}, 0x10001')
    a(f's_lshr_b32 s{S_N2}, s{S_IDX}, 2')
    a('v_lshrrev_b32 v3, 3, v2')
    a('v_and_b32 v4, 7, v2')
    a('v_xor_b32 v4, v4, v3')
    a('v_lshlrev_b32 v4, 4, v4')
    a('v_mul_u32_u24 v3, 7168, v3')
    a('v_add_u32 v3, v3, v4')
    a(f's_mul_i32 s60, s{S_TM}, {128*7168}')
    a(f's_mul_i32 s61, s{S_W4}, {32*7168}')
    a('s_add_u32 s60, s60, s61')
    a(f's_mul_i32 s61, s{S_KH}, 3584')
    a('s_add_u32 s60, s60, s61')
    for i in range(4):
        a(f's_add_u32 s61, s60, {i*8*7168 - i*1024}')
        a(f'v_add_u32 v{VX[i]}, s61, v3')
    a('v_lshrrev_b32 v3, 4, v2')
    a('v_bfe_u32 v4, v2, 1, 3')
    a('v_xor_b32 v4, v4, v3')
    a('v_and_b32 v5, 1, v2')
    a('v_lshlrev_b32 v5, 4, v5')
    a('v_lshlrev_b32 v6, 11, v3')
    a('v_add_u32 v5, v5, v6')
    a(f's_lshl_b32 s60, s{S_N2}, 8')
    a(f's_lshl_b32 s61, s{S_W4}, 15')
    a('s_add_u32 s60, s60, s61')
    a(f's_mul_i32 s61, s{S_KH}, {1792*2048}')
    a('s_add_u32 s60, s60, s61')
    for i in range(4):
        a(f'v_xor_b32 v6, {(i>>1)<<2}, v4')
        a('v_lshlrev_b32 v6, 5, v6')
        a('v_add_u32 v6, v6, v5')
        a(f's_add_u32 s61, s60, {i*4*2048 - i*1024}')
        a(f'v_add_u32 v{VW[i]}, s61, v6')
    a(f's_lshl_b32 s65, s{S_W4}, 12')
    def g2_x(j):
        a(f's_mov_b32 s67, {j*128}')
        a(f's_add_u32 m0, s65, {G2_XB + (j % G2_NSX)*G2_XSZ}')
        a('s_nop 0')
        for i in range(4):
            a(f'buffer_load_dwordx4 v{VX[i]}, s[{SWS}:{SWS+3}], s67 offen offset:{i*1024} sc1 lds'); vm.issue(('x2', j))
    def g2_w(j):
        a(f's_mov_b32 s67, {j*64*2048}')
        a(f's_add_u32 m0, s65, {G2_WB + (j % G2_NSW)*G2_WSZ}')
        a('s_nop 0')
        for i in range(4):
            a(f'buffer_load_dwordx4 v{VW[i]}, s[{SW2}:{SW2+3}], s67 offen offset:{i*1024} lds'); vm.issue(('w2', j))
    for j in range(G2_NSW): g2_w(j)
    a('v_lshrrev_b32 v3, 4, v2')
    a('v_lshlrev_b32 v3, 12, v3')
    a('v_and_b32 v4, 15, v2')
    a('v_lshlrev_b32 v4, 4, v4')
    a('v_add_u32 v3, v3, v4')
    a(f's_lshl_b32 s60, s{S_N2}, 7')
    a(f's_lshl_b32 s61, s{S_WN}, 6')
    a('s_add_u32 s60, s60, s61')
    a(f's_lshl_b32 s61, s{S_KH}, 5')
    a('s_add_u32 s60, s60, s61')
    a(f's_lshl_b32 s61, s{S_WM}, 4')
    a('s_add_u32 s60, s60, s61')
    a('s_lshl_b32 s60, s60, 12')
    a(f's_lshl_b32 s61, s{S_TM}, 8')
    a('s_add_u32 s60, s60, s61')
    a(f's_add_u32 s60, s60, {YT_OFF}')
    a(f's_add_u32 m0, s65, {YL}')
    for q in range(4):
        a(f's_add_u32 s61, s60, {q*4*4096 - q*1024}')
        a(f'buffer_load_dwordx4 v3, s[{SWS}:{SWS+3}], s61 offen offset:{q*1024} sc1 lds'); vm.issue(('y', 0))
    a('s_barrier')
    a(f's_cmp_lg_u32 s{S_WAVE}, 4')
    a(f's_cbranch_scc1 {L("nopoll")}')
    a('v_mov_b32 v22, 4')
    a(f'buffer_load_dwordx2 v[24:25], v22, s[{SDBG}:{SDBG+3}], 0 offen sc1')
    a('s_waitcnt vmcnt(0)')
    a('v_readfirstlane_b32 s61, v25')
    a(f's_mov_b32 s{S_MODE}, ' + ('1' if force_slow else 's61'))
    a('s_mov_b64 exec, 0x200')
    a(f's_cmp_eq_u32 s{S_MODE}, 0')
    a(f's_cbranch_scc0 {L("fl1")}')
    a(f'buffer_store_dword v21, v20, s[{SWS}:{SWS+3}], 0 offen')
    a(f's_branch {L("fl2")}')
    a.label(L('fl1'))
    a(f'buffer_store_dword v21, v20, s[{SWS}:{SWS+3}], 0 offen sc1')
    a.label(L('fl2'))
    a('s_mov_b64 exec, 0xff')
    a('s_mov_b32 s76, 200000')
    a.label(L('poll1'))
    a('s_sub_u32 s76, s76, 1')
    a('s_cmp_eq_u32 s76, 0')
    a(f's_cbranch_scc1 {L("poll1d")}')
    a(f'buffer_load_dword v22, v20, s[{SWS}:{SWS+3}], 0 offen sc1')
    a('s_waitcnt vmcnt(0)')
    a('v_cmp_ne_u32 vcc, v22, v21')
    a('s_nop 4')
    a(f's_cbranch_vccz {L("poll1d")}')
    a('s_sleep 1')
    a(f's_branch {L("poll1")}')
    a.label(L('poll1d'))
    a('s_mov_b64 exec, -1')
    a.label(L('nopoll'))
    a('s_barrier')
    for j in range(G2_NSX): g2_x(j)
    a(f's_waitcnt vmcnt({vm.wait_for([("x2",0),("w2",0),("y",0)])})')
    a('s_barrier')
    for s in range(27):
        a(f's_waitcnt vmcnt({vm.wait_for([("x2",s+1),("w2",s+1)])})')
        a('s_barrier')
        if s + G2_NSX < 28: g2_x(s + G2_NSX)
        if s + G2_NSW < 28: g2_w(s + G2_NSW)
    a('s_barrier')
    a(f's_cmp_lg_u32 s{S_WAVE}, 4')
    a(f's_cbranch_scc1 {L("nopoll2")}')
    a('s_mov_b64 exec, 0x400')
    a(f's_cmp_eq_u32 s{S_MODE}, 0')
    a(f's_cbranch_scc0 {L("fx1")}')
    a(f'buffer_store_dword v21, v20, s[{SWS}:{SWS+3}], 0 offen')
    a(f's_branch {L("fx2")}')
    a.label(L('fx1'))
    a(f'buffer_store_dword v21, v20, s[{SWS}:{SWS+3}], 0 offen sc1')
    a.label(L('fx2'))
    a('s_mov_b64 exec, 0x100')
    a('s_mov_b32 s76, 200000')
    a.label(L('poll2'))
    a('s_sub_u32 s76, s76, 1')
    a('s_cmp_eq_u32 s76, 0')
    a(f's_cbranch_scc1 {L("poll2d")}')
    a(f'buffer_load_dword v22, v20, s[{SWS}:{SWS+3}], 0 offen sc1')
    a('s_waitcnt vmcnt(0)')
    a('v_cmp_ne_u32 vcc, v22, v21')
    a('s_nop 4')
    a(f's_cbranch_vccz {L("poll2d")}')
    a('s_sleep 1')
    a(f's_branch {L("poll2")}')
    a.label(L('poll2d'))
    a('s_mov_b64 exec, -1')
    a.label(L('nopoll2'))
    a('s_barrier')
    a.label(L('end'))
    a('s_endpgm')

def build(fn, **kw):
    a = Asm()
    hdr = HEADER_COMMENT + "; @launch kernel=fft1_kernel grid=(256,1,1) block=(256,1,1) lds=32768\n" + \
          f"; @launch kernel=fft2_kernel grid=(256,1,1) block=(256,1,1) lds={16384+4*F.XS}\n" + \
          f"; @launch kernel=ffn_kernel grid=(256,1,1) block=(512,1,1) lds=163840\n"
    a.raw('.amdgcn_target "amdgcn-amd-amdhsa--gfx950"')
    F.gen_pass1(a, 'fft1_kernel')
    F.gen_pass2(a, 'fft2_kernel')
    gen_ffn(a, 'ffn_kernel', **kw)
    open(fn, 'w').write(hdr + a.text() + kernel_desc('fft1_kernel', 168, 48) + kernel_desc('fft2_kernel', 168, 48)
                        + kernel_desc('ffn_kernel', 256, 102, 256))

if __name__ == '__main__':
    build('m1.s')
    build('m1s.s', stampon=True)
    build('m1i.s', stampon=True, itstamp=True)
```

```python
from gemm import *
import fft as F
from fft import CC, SC, NSC, ZR, ZI, TR, TI, TC, TS, cidx
from mega import VM, GemmM, stamp

H_OFF = 0
VB_OFF = 0x1000000
YT_OFF = 0x1400000
G_OFF = 0x1800000
FH_OFF = 0x1810000
FX_OFF = 0x1811000
EX_OFF = 0x1900000
ST_OFF = 0x4000000
WS_WIN = 0x8000000

S_WAVE, S_W4, S_SLOT, S_SX, S_IDX = 3, 4, 5, 6, 7
SX, SW1, SW2, SWS, SOUT, SDBG, STMP = 8, 12, 16, 20, 24, 28, 32
P_W1, P_B1, P_W2, P_B2, P_GW, P_OUT, P_DBG, P_WS, P_X = 36, 38, 40, 42, 44, 46, 48, 50, 52
S_MODE = 54
S_TM, S_TN, S_WM, S_WN = 56, 57, 58, 59
S_KH, S_N2 = 74, 75
XS2 = 8448

def poll_loop(a, L, tag, load, cmp_instrs, limit=200000, sleep=1):
    a(f's_mov_b32 s76, {limit}')
    a.label(L(tag))
    for i in load: a(i)
    a('s_waitcnt vmcnt(0)')
    for i in cmp_instrs: a(i)
    a('s_nop 4')
    a(f's_cbranch_vccz {L(tag+"_d")}')
    a('s_sub_u32 s76, s76, 1')
    a('s_cmp_eq_u32 s76, 0')
    a(f's_cbranch_scc1 {L(tag+"_d")}')
    a(f's_sleep {sleep}')
    a(f's_branch {L(tag)}')
    a.label(L(tag+'_d'))

def gen_mega(a, name, stampon=False, itstamp=False, rotx=2, force_slow=False, static_slot=False, pfw2=True):
    L = lambda s: f'{name}_{s}'
    kernel_begin(a, name)
    stamp(a, stampon, 80)
    a('s_cmp_ge_u32 s2, 256')
    a(f's_cbranch_scc1 {L("end")}')
    a(f's_load_dwordx8 s[{P_W1}:{P_W1+7}], s[0:1], 48')
    a(f's_load_dwordx8 s[{P_GW}:{P_GW+7}], s[0:1], 80')
    a(f's_load_dwordx2 s[{P_X}:{P_X+1}], s[0:1], 0')
    a('s_getreg_b32 s60, hwreg(HW_REG_XCC_ID)')
    a('v_lshrrev_b32 v2, 6, v0')
    a('v_and_b32 v1, 63, v0')
    a(f'v_readfirstlane_b32 s{S_WAVE}, v2')
    a('s_and_b32 s60, s60, 7')
    a(f's_and_b32 s{S_W4}, s{S_WAVE}, 3')
    a(f's_and_b32 s{S_WM}, s{S_W4}, 1')
    a(f's_lshr_b32 s{S_WN}, s{S_W4}, 1')
    a('s_waitcnt lgkmcnt(0)')
    srd(a, SX, P_X, 2048*1024*2)
    srd(a, SWS, P_WS, WS_WIN)
    srd(a, SDBG, P_DBG, 256)
    srd(a, SW1, P_W1, 1024*3584*2)
    srd(a, SW2, P_W2, 3584*1024*2)
    srd(a, SOUT, P_OUT, 2048*1024*2)
    G1_XB, G1_XSZ, G1_NSX = 0, 16384, 3
    G1_WB, G1_WSZ, G1_NSW = 49152, 28672, 4
    F1_LDS = G1_WB + 3*G1_WSZ
    SLOT_LDS = 160*1024 - 64
    G2_XB, G2_XSZ, G2_NSX = 0, 16384, 3
    G2_WB, G2_WSZ, G2_NSW = 49152, 16384, 6
    YL = 147456
    F2_IN = 147456
    F2_EX = G2_WB + 3*G2_WSZ
    a(f's_cmp_ge_u32 s{S_WAVE}, 4')
    a(f's_cbranch_scc1 {L("aux")}')

    def read_slot():
        a(f'v_mov_b32 v4, {SLOT_LDS}')
        a('ds_read_b32 v3, v4')
        a('s_waitcnt lgkmcnt(0)')
        a(f'v_readfirstlane_b32 s{S_SLOT}, v3')
        a(f's_lshr_b32 s{S_SX}, s{S_SLOT}, 5')
        a(f's_and_b32 s{S_IDX}, s{S_SLOT}, 31')
        a(f's_and_b32 s60, s{S_IDX}, 1')
        a(f's_lshl_b32 s{S_TM}, s{S_SX}, 1')
        a(f's_add_u32 s{S_TM}, s{S_TM}, s60')
        a(f's_lshr_b32 s{S_TN}, s{S_IDX}, 1')
        a(f's_bfe_u32 s{S_KH}, s{S_IDX}, 0x10001')
        a(f's_lshr_b32 s{S_N2}, s{S_IDX}, 2')

    srd(a, STMP, P_GW, 2048)
    a('v_lshlrev_b32 v7, 5, v1')
    a(f'buffer_load_dwordx4 v[128:131], v7, s[{STMP}:{STMP+3}], 0 offen')
    a(f'buffer_load_dwordx4 v[132:135], v7, s[{STMP}:{STMP+3}], 0 offen offset:16')
    F.gen_consts(a, 1)
    F.gen_twiddle(a, 1)
    a(f's_lshl_b32 s61, s{S_W4}, 12')
    a(f's_add_u32 s61, s61, {F1_LDS}')
    a('v_lshrrev_b32 v2, 5, v1')
    a('v_bfe_u32 v3, v1, 2, 2')
    a('v_lshl_add_u32 v2, v2, 2, v3')
    a('v_lshlrev_b32 v2, 6, v2')
    a('v_bfe_u32 v3, v1, 4, 1')
    a('v_lshlrev_b32 v3, 5, v3')
    a('v_and_b32 v4, 3, v1')
    a('v_lshlrev_b32 v4, 3, v4')
    a('v_add3_u32 v8, v2, v3, v4')
    a('v_add_u32 v8, s61, v8')
    a('v_lshlrev_b32 v9, 5, v1')
    a('v_add_u32 v9, s61, v9')
    a('s_barrier')
    stamp(a, stampon, 82)
    F.gen_loads(a, 8, 16*64, 8*64, 2048)
    a('ds_read_b128 v[136:139], v9')
    a('ds_read_b128 v[140:143], v9 offset:16')
    a('ds_read_b128 v[144:147], v9 offset:2048')
    a('ds_read_b128 v[148:151], v9 offset:2064')
    read_slot()
    a('s_barrier')
    F.gen_stageA(a)
    a('s_waitcnt vmcnt(0)')
    a('v_mov_b32 v152, 0'); a('v_mov_b32 v153, 0')
    for i in range(8):
        a(f'v_dot2_f32_bf16 v152, v{136+i}, v{128+i}, v152')
        a(f'v_dot2_f32_bf16 v153, v{144+i}, v{128+i}, v153')
    for ctl in ['row_shr:1 row_mask:0xf', 'row_shr:2 row_mask:0xf', 'row_shr:4 row_mask:0xf', 'row_shr:8 row_mask:0xf', 'row_bcast:15 row_mask:0xa', 'row_bcast:31 row_mask:0xc']:
        a('s_nop 1')
        a(f'v_add_f32_dpp v152, v152, v152 {ctl} bank_mask:0xf')
        a(f'v_add_f32_dpp v153, v153, v153 {ctl} bank_mask:0xf')
    srd(a, STMP, P_B1, 3584*2)
    a('v_lshrrev_b32 v7, 4, v1')
    a(f's_mul_i32 s60, s{S_TN}, 448')
    a(f's_mul_i32 s61, s{S_WN}, 224')
    a('s_add_u32 s60, s60, s61')
    a('v_lshlrev_b32 v7, 3, v7')
    BI = 160
    for nt in range(7):
        a(f'buffer_load_dwordx2 v[{BI+2*nt}:{BI+2*nt+1}], v7, s[{STMP}:{STMP+3}], s60 offen offset:{nt*32}')
    srd(a, STMP, P_B2, 2048)
    a(f's_lshl_b32 s60, s{S_N2}, 8')
    a(f's_lshl_b32 s61, s{S_WN}, 7')
    a('s_add_u32 s60, s60, s61')
    a(f's_lshl_b32 s61, s{S_KH}, 6')
    a('s_add_u32 s60, s60, s61')
    BT = 246
    for j in range(2):
        a(f'buffer_load_dwordx2 v[{BT+2*j}:{BT+2*j+1}], v7, s[{STMP}:{STMP+3}], s60 offen offset:{j*32}')
    F.gen_tw_apply(a)
    F.gen_stageB(a, data_is_A=False)
    for r in (152, 153):
        a(f'v_mul_f32 v{r}, 0xbfb8aa3b, v{r}')
        a(f'v_exp_f32 v{r}, v{r}')
        a('s_nop 0')
        a(f'v_add_f32 v{r}, 1.0, v{r}')
        a(f'v_rcp_f32 v{r}, v{r}')
    a('v_and_b32 v2, 31, v1')
    a('v_lshlrev_b32 v2, 4, v2')
    a('v_lshrrev_b32 v3, 5, v1')
    a('v_lshlrev_b32 v3, 11, v3')
    a(f's_lshl_b32 s60, s{S_W4}, 1')
    a(f's_add_u32 s60, s60, {F1_LDS}')
    a('v_add3_u32 v10, v2, v3, s60')
    for plane, R in ((0, TR), (1, TI)):
        for p in range(8):
            a(f'v_cvt_pk_bf16_f32 v{ZR+p + 8*plane}, v{R+2*p}, v{R+2*p+1}')
    for plane in range(2):
        for p in range(8):
            src = ZR + p + 8*plane
            a(f'ds_write_b16 v10, v{src} offset:{512*cidx(2*p) + plane*8}')
            a(f'ds_write_b16_d16_hi v10, v{src} offset:{512*cidx(2*p+1) + plane*8}')
    a('s_lshl_b32 s60, s2, 5')
    a(f's_lshl_b32 s61, s{S_W4}, 3')
    a('s_add_u32 s60, s60, s61')
    a(f's_add_u32 s60, s60, {G_OFF}')
    a('v_mov_b32 v11, s60')
    a('v_cmp_eq_u32 vcc, 63, v1')
    a('s_and_saveexec_b64 s[62:63], vcc')
    a(f'buffer_store_dwordx2 v[152:153], v11, s[{SWS}:{SWS+3}], 0 offen sc1')
    a('s_mov_b64 exec, s[62:63]')
    a('s_waitcnt lgkmcnt(0)')
    a('s_barrier')
    for i in range(4):
        a(f'v_add_u32 v12, {256*i}, v0')
        a('v_lshlrev_b32 v13, 4, v12')
        a(f'v_add_u32 v13, {F1_LDS}, v13')
        a(f'ds_read_b128 v[{136+4*i}:{139+4*i}], v13')
        if i < 2:
            a('v_mov_b32 v14, v12'); half = 0
        else:
            a('v_sub_u32 v14, 1024, v12'); a('v_and_b32 v14, 511, v14'); half = 1
        a('v_lshrrev_b32 v15, 1, v14')
        a('v_lshlrev_b32 v15, 14, v15')
        a('v_and_b32 v14, 1, v14')
        a('v_lshlrev_b32 v14, 4, v14')
        a(f'v_add3_u32 v{156+i}, v15, v14, {half*32}')
    a('s_lshl_b32 s60, s2, 6')
    a(f's_add_u32 s60, s60, {VB_OFF}')
    for i in range(4):
        a(f's_waitcnt lgkmcnt({3-i})')
        a(f'buffer_store_dwordx4 v[{136+4*i}:{139+4*i}], v{156+i}, s[{SWS}:{SWS+3}], s60 offen sc1')
    X0, W0, X1, W1 = 16, 32, 64, 80
    ACC = 128
    VX0, VX1, VWA, VWB, VWC, VWD = 240, 241, 242, 243, 244, 245
    g1 = GemmM(a, 'g1', 7, ACC, X0, W0, X1, W1, [VX0, VX1], [VWA, VWB],
               lambda nt: (VWA if nt % 2 == 0 else VWB, nt*32), 32*448, 4*448, G1_NSX, G1_XSZ, G1_NSW, G1_WSZ, 16, 64, 20)
    a('v_and_b32 v3, 15, v1')
    a('v_lshrrev_b32 v7, 4, v1')
    a('v_and_b32 v15, 7, v1')
    a('v_xor_b32 v15, v15, v7')
    a('v_lshlrev_b32 v15, 4, v15')
    a(f's_lshl_b32 s60, s{S_WM}, 13')
    a('v_lshlrev_b32 v4, 7, v3')
    a('v_add_u32 v4, v4, v15')
    a(f'v_add_u32 v{VX0}, s60, v4')
    a(f'v_xor_b32 v{VX1}, 64, v{VX0}')
    a('v_bfe_u32 v15, v1, 2, 2')
    a('v_lshl_add_u32 v15, v7, 3, v15')
    a('v_mul_u32_u24 v15, 448, v15')
    a('v_and_b32 v5, 3, v1')
    a('v_lshl_add_u32 v15, v5, 3, v15')
    a('v_and_b32 v6, 1, v7')
    a('v_lshlrev_b32 v6, 5, v6')
    a(f's_mul_i32 s60, s{S_WN}, 224')
    a(f's_add_u32 s60, s60, {G1_WB}')
    a('v_add_u32 v15, s60, v15')
    a('v_add_u32 v13, v15, v6')
    a('v_sub_u32 v14, v15, v6')
    a(f's_cmp_eq_u32 s{S_WN}, 0')
    a('s_cselect_b64 vcc, -1, 0')
    a('s_nop 1')
    a(f'v_cndmask_b32 v{VWA}, v14, v13, vcc')
    a(f'v_cndmask_b32 v{VWB}, v13, v14, vcc')
    a('s_waitcnt vmcnt(5)')
    for i in range(14): a(f'v_mov_b32 v{96+i}, v{BI+i}')
    for nt in range(7):
        r0 = 96+2*nt
        A0 = g1.acc(0,nt)
        a(f'v_lshlrev_b32 v{A0}, 16, v{r0}')
        a(f'v_and_b32 v{A0+1}, 0xffff0000, v{r0}')
        a(f'v_lshlrev_b32 v{A0+2}, 16, v{r0+1}')
        a(f'v_and_b32 v{A0+3}, 0xffff0000, v{r0+1}')
        for mt in range(1,4):
            for r in range(4):
                a(f'v_mov_b32 v{g1.acc(mt,nt)+r}, v{A0+r}')
    g1.init_state()
    if itstamp:
        g1.its = 254
        a('s_mov_b32 s73, 0')
    a('s_barrier')
    stamp(a, stampon, 84)
    for ins in g1.reads(0, X0, W0): a(ins)
    a('s_mov_b32 s72, 15')
    a.label(L('g1loop'))
    a('s_cmp_eq_u32 s72, 12')
    a(f's_cbranch_scc0 {L("g1c1")}')
    a('s_waitcnt vmcnt(0)')
    a.label(L('g1c1'))
    if pfw2:
        a('s_cmp_eq_u32 s72, 9')
        a(f's_cbranch_scc0 {L("g1c2")}')
        a(f's_mul_i32 s60, s{S_SLOT}, 28672')
        a(f's_lshl_b32 s61, s{S_W4}, 13')
        a('s_add_u32 s60, s60, s61')
        a('v_lshlrev_b32 v3, 6, v1')
        a(f'buffer_load_dword v4, v3, s[{SW2}:{SW2+3}], s60 offen')
        a('s_add_u32 s60, s60, 4096')
        a(f'buffer_load_dword v5, v3, s[{SW2}:{SW2+3}], s60 offen')
        a.label(L('g1c2'))
    g1.body(True)
    a('s_sub_u32 s72, s72, 1')
    a('s_cmp_lg_u32 s72, 0')
    a(f's_cbranch_scc1 {L("g1loop")}')
    a('v_mov_b32 v8, 4')
    a(f'buffer_load_dwordx2 v[10:11], v8, s[{SDBG}:{SDBG+3}], 0 offen sc1')
    g1.body(False, bar=True)
    stamp(a, stampon, 86)
    def dump_its(reg, off):
        a(f's_lshl_b32 s60, s{S_SLOT}, 9')
        a(f's_add_u32 s60, s60, {ST_OFF + off}')
        a('v_lshlrev_b32 v3, 2, v1')
        a(f's_cmp_lg_u32 s{S_WAVE}, 0')
        lab = L(f'dumpskip{reg}_{off}')
        a(f's_cbranch_scc1 {lab}')
        a(f'buffer_store_dword v{reg}, v3, s[{SWS}:{SWS+3}], s60 offen')
        a(f'buffer_store_dword v{reg+1}, v3, s[{SWS}:{SWS+3}], s60 offen offset:256')
        a.label(lab)
    if itstamp: dump_its(254, 0x10000)
    a('s_mov_b32 s76, 200000')
    a.label(L('modechk'))
    a('s_waitcnt vmcnt(0)')
    a('v_readfirstlane_b32 s60, v10')
    a('v_readfirstlane_b32 s61, v11')
    a('s_cmp_eq_u32 s60, 256')
    a(f's_cbranch_scc1 {L("modeok")}')
    a('s_sub_u32 s76, s76, 1')
    a('s_cmp_eq_u32 s76, 0')
    a(f's_cbranch_scc1 {L("modeok")}')
    a('s_sleep 2')
    a(f'buffer_load_dwordx2 v[10:11], v8, s[{SDBG}:{SDBG+3}], 0 offen sc1')
    a(f's_branch {L("modechk")}')
    a.label(L('modeok'))
    a(f's_mov_b32 s{S_MODE}, ' + ('1' if force_slow else 's61'))
    a('v_and_b32 v3, 15, v1')
    a('v_lshrrev_b32 v7, 4, v1')
    a(f's_lshl_b32 s60, s{S_TM}, 7')
    a(f's_lshl_b32 s61, s{S_WM}, 6')
    a('s_add_u32 s60, s60, s61')
    a('v_add_u32 v3, s60, v3')
    a('v_mov_b32 v254, v3') if not itstamp else a('v_mov_b32 v90, v3')
    a('v_mul_u32_u24 v3, 7168, v3')
    a(f's_mul_i32 s60, s{S_TN}, 448')
    a(f's_mul_i32 s61, s{S_WN}, 224')
    a('s_add_u32 s60, s60, s61')
    a('v_add_u32 v3, s60, v3')
    a('v_and_b32 v8, 1, v7')
    a('v_lshrrev_b32 v9, 1, v7')
    a('v_lshlrev_b32 v9, 4, v9')
    a('v_lshlrev_b32 v10, 5, v8')
    a('v_add3_u32 v10, v3, v10, v9')
    a('v_mul_u32_u24 v8, 0x1c000, v8')
    a('v_add3_u32 v11, v3, v8, v9')
    def epi1(sc):
        grp = 0
        def emit_pair(P, Q, addr, soff, off):
            nonlocal grp
            R = 16 + 4*grp; grp += 1
            for base in (P, Q):
                for r in range(4):
                    a(f'v_mul_f32 v{base+r}, v{base+r}, |v{base+r}|')
            a(f'v_cvt_pk_bf16_f32 v{R}, v{P}, v{P+1}')
            a(f'v_cvt_pk_bf16_f32 v{R+1}, v{P+2}, v{P+3}')
            a(f'v_cvt_pk_bf16_f32 v{R+2}, v{Q}, v{Q+1}')
            a(f'v_cvt_pk_bf16_f32 v{R+3}, v{Q+2}, v{Q+3}')
            for r in range(4):
                a(f'v_pk_max_i16 v{R+r}, v{R+r}, 0')
            a(f's_mov_b32 s60, {soff}')
            a('s_nop 0')
            a(f'v_permlane16_swap_b32 v{R}, v{R+2}')
            a(f'v_permlane16_swap_b32 v{R+1}, v{R+3}')
            a(f'buffer_store_dwordx4 v[{R}:{R+3}], v{addr}, s[{SWS}:{SWS+3}], s60 offen offset:{off}{sc}')
        for mt in range(4):
            for p in range(3):
                emit_pair(g1.acc(mt,2*p), g1.acc(mt,2*p+1), 10, mt*16*7168, p*64)
        for mp in range(2):
            emit_pair(g1.acc(2*mp,6), g1.acc(2*mp+1,6), 11, mp*32*7168, 192)
    a(f's_cmp_eq_u32 s{S_MODE}, 0')
    a(f's_cbranch_scc0 {L("epi_slow")}')
    epi1('')
    a(f's_branch {L("epi_done")}')
    a.label(L('epi_slow'))
    epi1(' sc1')
    a.label(L('epi_done'))
    ROW = 254 if not itstamp else 90
    GR = 250
    a(f'v_lshlrev_b32 v9, 2, v{ROW}')
    a(f's_mov_b32 s60, {G_OFF}')
    for mt in range(4):
        a(f'buffer_load_dword v{GR+mt}, v9, s[{SWS}:{SWS+3}], s60 offen offset:{mt*64} sc1')
    if itstamp: a('v_mov_b32 v239, v90')
    F.gen_consts(a, 1)
    F.gen_twiddle(a, 1)
    a('v_lshrrev_b32 v2, 5, v1')
    a('v_bfe_u32 v3, v1, 2, 2')
    a('v_lshl_add_u32 v2, v2, 2, v3')
    a('v_lshlrev_b32 v2, 9, v2')
    a('v_bfe_u32 v3, v1, 4, 1')
    a('v_lshlrev_b32 v3, 2, v3')
    a('v_and_b32 v4, 3, v1')
    a('v_add_u32 v3, v3, v4')
    a('v_lshlrev_b32 v3, 6, v3')
    a(f's_lshl_b32 s60, s{S_W4}, 4')
    a(f's_add_u32 s60, s60, {F2_IN}')
    a('v_add3_u32 v8, v2, v3, s60')
    a('s_waitcnt vmcnt(4)')
    a('s_barrier')
    stamp(a, stampon, 88)
    F.gen_loads(a, 8, 16*512, 8*512, 8)
    a('s_waitcnt lgkmcnt(0)')
    F.gen_stageA(a)
    F.gen_tw_apply(a)
    F.gen_stageB(a, data_is_A=True)
    a('v_and_b32 v2, 31, v1')
    a('v_lshrrev_b32 v3, 5, v1')
    a('v_mul_u32_u24 v4, 33, v2')
    a('v_lshl_add_u32 v4, v3, 2, v4')
    a('v_lshlrev_b32 v4, 3, v4')
    a(f's_mul_i32 s60, s{S_W4}, {XS2}')
    a(f's_add_u32 s60, s60, {F2_EX}')
    a('v_add_u32 v10, s60, v4')
    for r in range(16):
        a(f'ds_write2_b32 v10, v{TR+r}, v{TI+r} offset0:{2*cidx(r)} offset1:{2*cidx(r)+1}')
    a('v_add_u32 v5, 31, v2')
    a('v_and_b32 v5, 31, v5')
    a('v_mul_u32_u24 v5, 33, v5')
    a('v_add_u32 v5, 32, v5')
    a('v_lshlrev_b32 v5, 3, v5')
    a('v_add_u32 v11, s60, v5')
    a('s_mov_b64 s[62:63], exec')
    a('s_mov_b32 exec_hi, 0')
    a(f'ds_write2_b32 v11, v{TR}, v{TI} offset0:0 offset1:1')
    a('s_mov_b64 exec, s[62:63]')
    a(f's_xor_b32 s61, s{S_W4}, 2')
    a(f's_and_b32 s62, s{S_W4}, 1')
    a('s_or_b32 s62, s62, s2')
    a('s_cmp_eq_u32 s62, 0')
    a(f's_cselect_b32 s61, s{S_W4}, s61')
    a(f's_mul_i32 s61, s61, {XS2}')
    a(f's_add_u32 s61, s61, {F2_EX}')
    a('v_sub_u32 v5, 31, v2')
    a('v_mul_u32_u24 v5, 33, v5')
    a('v_lshlrev_b32 v4, 2, v3')
    a('v_sub_u32 v5, v5, v4')
    a('v_add_u32 v5, 5, v5')
    a('v_lshlrev_b32 v5, 3, v5')
    a('v_add_u32 v11, s61, v5')
    a('v_lshlrev_b32 v5, 5, v2')
    a('v_lshl_add_u32 v5, v3, 2, v5')
    a('v_cvt_f32_u32 v5, v5')
    a('v_mul_f32 v5, 0x3a000000, v5')
    a('v_mov_b32 v6, 0x3a000000')
    a('v_mov_b32 v7, 0x3b200000')
    for i in range(16):
        if i > 0: a(f'v_add_f32 v5, v5, v{6 if (i&3) else 7}')
        a(f'v_cos_f32 v{TC+i}, v5')
        a(f'v_sin_f32 v{TS+i}, v5')
    a('s_waitcnt lgkmcnt(0)')
    a('s_barrier')
    P = 128
    for r in range(16):
        a(f'ds_read_b64 v[{P+2*r}:{P+2*r+1}], v11 offset:{(27-cidx(r))*8}')
    a('s_lshl_b32 s60, s2, 1')
    a(f's_and_b32 s61, s{S_W4}, 1')
    a('s_add_u32 s60, s60, s61')
    a('s_sub_u32 s61, 1024, s60')
    a('s_cmp_eq_u32 s60, 0')
    a('s_cselect_b32 s61, 512, s61')
    a(f's_cmp_ge_u32 s{S_W4}, 2')
    a('s_cselect_b32 s60, s61, s60')
    a('s_lshl_b32 s60, s60, 12')
    a(f's_add_u32 s60, s60, {YT_OFF}')
    a('v_lshlrev_b32 v12, 6, v2')
    a('v_lshl_add_u32 v12, v3, 4, v12')
    a('s_waitcnt lgkmcnt(0)')
    for r in range(16):
        c_, d_ = P+2*r, P+2*r+1
        a(f'v_sub_f32 v2, v{TR+r}, v{c_}')
        a(f'v_add_f32 v{TR+r}, v{TR+r}, v{c_}')
        a(f'v_add_f32 v{TI+r}, v{TI+r}, v{d_}')
        a(f'v_mul_f32 v2, v2, v{TS+r}')
        a(f'v_fma_f32 v2, v{TI+r}, v{TC+r}, -v2')
        a(f'v_sub_f32 v{TI+r}, v{TR+r}, v2')
        a(f'v_add_f32 v{TR+r}, v{TR+r}, v2')
    for yi, R in ((0, TR), (1, TI)):
        for qp in range(2):
            O = 40 + 4*(yi*2+qp)
            q = 2*qp
            a(f'v_cvt_pk_bf16_f32 v{O}, v{R+4*q}, v{R+4*q+1}')
            a(f'v_cvt_pk_bf16_f32 v{O+1}, v{R+4*q+2}, v{R+4*q+3}')
            a(f'v_cvt_pk_bf16_f32 v{O+2}, v{R+4*q+4}, v{R+4*q+5}')
            a(f'v_cvt_pk_bf16_f32 v{O+3}, v{R+4*q+6}, v{R+4*q+7}')
            a('s_nop 1')
            a(f'v_permlane32_swap_b32 v{O}, v{O+2}')
            a(f'v_permlane32_swap_b32 v{O+1}, v{O+3}')
            a(f'buffer_store_dwordx4 v[{O}:{O+3}], v12, s[{SWS}:{SWS+3}], s60 offen offset:{yi*2048 + q*16} sc1')
    X0b, W0b, X1b, W1b = 16, 32, 64, 80
    ACC2 = 128
    g2 = GemmM(a, 'g2', 4, ACC2, X0b, W0b, X1b, W1b, [VX0, VX1], [VWA, VWB, VWC, VWD],
               lambda nt: ([VWA, VWB, VWC, VWD][nt], 0), 32*256, 4*256, G2_NSX, G2_XSZ, G2_NSW, G2_WSZ, 28, 64, 11)
    a('v_and_b32 v3, 15, v1')
    a('v_lshrrev_b32 v7, 4, v1')
    a('v_and_b32 v15, 7, v1')
    a('v_xor_b32 v15, v15, v7')
    a('v_lshlrev_b32 v15, 4, v15')
    a(f's_lshl_b32 s60, s{S_WM}, 13')
    a('v_lshlrev_b32 v4, 7, v3')
    a('v_add_u32 v4, v4, v15')
    a(f'v_add_u32 v{VX0}, s60, v4')
    a(f'v_xor_b32 v{VX1}, 64, v{VX0}')
    a('v_bfe_u32 v15, v1, 2, 2')
    a('v_lshl_add_u32 v9, v7, 3, v15')
    a('v_lshlrev_b32 v9, 8, v9')
    a('v_and_b32 v8, 1, v7')
    a('v_lshl_or_b32 v15, v8, 2, v15')
    a(f's_lshl_b32 s60, s{S_WN}, 2')
    a('v_xor_b32 v15, s60, v15')
    a('v_lshlrev_b32 v15, 5, v15')
    a('v_and_b32 v8, 3, v1')
    a('v_lshlrev_b32 v8, 3, v8')
    a(f'v_add3_u32 v{VWA}, v9, v15, v8')
    a(f'v_add_u32 v{VWA}, {G2_WB}, v{VWA}')
    a(f'v_xor_b32 v{VWB}, 32, v{VWA}')
    a(f'v_xor_b32 v{VWC}, 64, v{VWA}')
    a(f'v_xor_b32 v{VWD}, 96, v{VWA}')
    for khv in range(2):
        if khv == 0:
            a(f's_cmp_eq_u32 s{S_KH}, 0')
            a(f's_cbranch_scc0 {L("ini1")}')
        else:
            a.label(L('ini1'))
        for nt in range(4):
            A0 = g2.acc(0, nt)
            if nt // 2 == khv:
                r0 = BT + 2*(nt & 1)
                a(f'v_lshlrev_b32 v{A0}, 16, v{r0}')
                a(f'v_and_b32 v{A0+1}, 0xffff0000, v{r0}')
                a(f'v_lshlrev_b32 v{A0+2}, 16, v{r0+1}')
                a(f'v_and_b32 v{A0+3}, 0xffff0000, v{r0+1}')
                for mt in range(1,4):
                    for r in range(4):
                        a(f'v_mov_b32 v{g2.acc(mt,nt)+r}, v{A0+r}')
            else:
                for mt in range(4):
                    for r in range(4):
                        a(f'v_mov_b32 v{g2.acc(mt,nt)+r}, 0')
        if khv == 0:
            a(f's_branch {L("ini2")}')
    a.label(L('ini2'))
    g2.init_state()
    if itstamp:
        g2.its = 200
        a('s_mov_b32 s73, 0')
    a('s_barrier')
    stamp(a, stampon, 90)
    for ins in g2.reads(0, X0b, W0b): a(ins)
    a('s_mov_b32 s72, 27')
    a.label(L('g2loop'))
    a('s_cmp_eq_u32 s72, 24')
    a(f's_cbranch_scc0 {L("g2c1")}')
    a('s_waitcnt vmcnt(0)')
    a.label(L('g2c1'))
    g2.body(True)
    a('s_sub_u32 s72, s72, 1')
    a('s_cmp_lg_u32 s72, 0')
    a(f's_cbranch_scc1 {L("g2loop")}')
    g2.body(False, bar=False)
    stamp(a, stampon, 92)
    if itstamp: dump_its(200, 0x40000)
    a('s_nop 7')
    a(f's_xor_b32 s60, s{S_SLOT}, 2')
    a('s_lshl_b32 s60, s60, 15')
    a(f's_lshl_b32 s61, s{S_W4}, 13')
    a('s_add_u32 s60, s60, s61')
    a(f's_add_u32 s60, s60, {EX_OFF}')
    a('v_lshlrev_b32 v8, 4, v1')
    for khv in range(2):
        for mode in range(2):
            if (khv, mode) == (0, 0):
                a(f's_lshl_b32 s61, s{S_KH}, 1')
                a(f's_cmp_lg_u32 s{S_MODE}, 0')
                a('s_cselect_b32 s62, 1, 0')
                a('s_add_u32 s61, s61, s62')
                a('s_cmp_eq_u32 s61, 1'); a(f's_cbranch_scc1 {L("ex01")}')
                a('s_cmp_eq_u32 s61, 2'); a(f's_cbranch_scc1 {L("ex10")}')
                a('s_cmp_eq_u32 s61, 3'); a(f's_cbranch_scc1 {L("ex11")}')
            else:
                a.label(L(f'ex{khv}{mode}'))
            for i in range(8):
                nt = 2*(1-khv) + (i >> 2); mt = i & 3
                A0 = g2.acc(mt, nt)
                a(f's_add_u32 s62, s60, {i*1024}')
                a(f'buffer_store_dwordx4 v[{A0}:{A0+3}], v8, s[{SWS}:{SWS+3}], s62 offen' + (' sc1' if mode else ''))
            a(f's_branch {L("exdone")}')
    a.label(L('exdone'))
    ROW2 = 254 if not itstamp else 239
    a('v_lshrrev_b32 v7, 4, v1')
    a('v_bfe_u32 v15, v1, 2, 2')
    a('v_lshl_add_u32 v15, v7, 2, v15')
    a(f's_lshl_b32 s61, s{S_WN}, 5')
    a('v_add_u32 v15, s61, v15')
    a('v_lshlrev_b32 v15, 8, v15')
    a('v_and_b32 v3, 3, v1')
    a('v_lshlrev_b32 v3, 3, v3')
    a(f's_lshl_b32 s61, s{S_WM}, 7')
    a(f's_add_u32 s61, s61, {YL}')
    a('v_add3_u32 v15, v15, v3, s61')
    YR = 16
    for j in range(2):
        for mt in range(4):
            i = j*4+mt
            a(f'ds_read_b64_tr_b16 v[{YR+2*i}:{YR+2*i+1}], v15 offset:{j*4096 + mt*32}')
    OM = 84
    for mt in range(4):
        a(f'v_sub_f32 v{OM+mt}, 1.0, v{GR+mt}')
        a(f'v_mul_f32 v{GR+mt}, 0.5, v{GR+mt}')
    a(f'v_lshlrev_b32 v9, 11, v{ROW2}')
    a(f's_lshl_b32 s61, s{S_N2}, 8')
    a(f's_lshl_b32 s62, s{S_WN}, 7')
    a('s_add_u32 s61, s61, s62')
    a(f's_lshl_b32 s62, s{S_KH}, 6')
    a('s_add_u32 s61, s61, s62')
    a('v_and_b32 v10, 1, v7')
    a('v_lshlrev_b32 v10, 5, v10')
    a('v_lshrrev_b32 v11, 1, v7')
    a('v_lshlrev_b32 v11, 4, v11')
    a('v_add3_u32 v10, v10, v11, s61')
    a('v_add_u32 v9, v9, v10')
    K0 = 192
    for khv in range(2):
        if khv == 0:
            a(f's_cmp_eq_u32 s{S_KH}, 0')
            a(f's_cbranch_scc0 {L("kp1")}')
        else:
            a.label(L('kp1'))
        for i in range(8):
            nt = 2*khv + (i >> 2); mt = i & 3
            for r in range(4):
                a(f'v_mov_b32 v{K0+4*i+r}, v{g2.acc(mt,nt)+r}')
        if khv == 0: a(f's_branch {L("kp2")}')
    a.label(L('kp2'))
    a('s_waitcnt lgkmcnt(0)')
    for mt in range(4):
        for j in range(2):
            i = j*4 + mt
            A = K0 + 4*i
            y0, y1 = YR+2*i, YR+2*i+1
            a(f'v_lshlrev_b32 v32, 16, v{y0}')
            a(f'v_and_b32 v33, 0xffff0000, v{y0}')
            a(f'v_lshlrev_b32 v34, 16, v{y1}')
            a(f'v_and_b32 v35, 0xffff0000, v{y1}')
            for r in range(4):
                a(f'v_mul_f32 v{A+r}, v{A+r}, v{OM+mt}')
            for r in range(4):
                a(f'v_fma_f32 v{A+r}, v{32+r}, v{GR+mt}, v{A+r}')
    a('s_waitcnt vmcnt(0)')
    a('s_barrier')
    a('s_barrier')
    stamp(a, stampon, 94)
    a(f's_lshl_b32 s60, s{S_SLOT}, 15')
    a(f's_lshl_b32 s61, s{S_W4}, 13')
    a('s_add_u32 s60, s60, s61')
    a(f's_add_u32 s60, s60, {EX_OFF}')
    RX = 96
    for mt in range(4):
        for j in range(2):
            i = j*4 + mt
            a(f's_add_u32 s62, s60, {i*1024}')
            a(f'buffer_load_dwordx4 v[{RX+4*i}:{RX+4*i+3}], v8, s[{SWS}:{SWS+3}], s62 offen sc1')
    for mt in range(4):
        a(f's_waitcnt vmcnt({6-2*mt + mt})')
        for j in range(2):
            i = j*4 + mt
            A = K0 + 4*i
            for r in range(4):
                a(f'v_fma_f32 v{A+r}, v{RX+4*i+r}, v{OM+mt}, v{A+r}')
        R = 40 + 4*mt
        Pp, Q = K0 + 4*mt, K0 + 4*(4+mt)
        a(f'v_cvt_pk_bf16_f32 v{R}, v{Pp}, v{Pp+1}')
        a(f'v_cvt_pk_bf16_f32 v{R+1}, v{Pp+2}, v{Pp+3}')
        a(f'v_cvt_pk_bf16_f32 v{R+2}, v{Q}, v{Q+1}')
        a(f'v_cvt_pk_bf16_f32 v{R+3}, v{Q+2}, v{Q+3}')
        a('s_nop 1')
        a(f'v_permlane16_swap_b32 v{R}, v{R+2}')
        a(f'v_permlane16_swap_b32 v{R+1}, v{R+3}')
        a(f's_mov_b32 s60, {mt*16*2048}')
        a(f'buffer_store_dwordx4 v[{R}:{R+3}], v9, s[{SOUT}:{SOUT+3}], s60 offen')
    if stampon:
        a('s_waitcnt vmcnt(0)')
        stamp(a, True, 96)
        a('s_waitcnt lgkmcnt(0)')
        for i in range(9):
            a(f'v_mov_b32 v{16+i}, s{80+2*i}')
        for i in range(9, 12): a(f'v_mov_b32 v{16+i}, 0')
        a(f's_lshl_b32 s60, s{S_SLOT}, 6')
        a(f's_add_u32 s60, s60, {ST_OFF}')
        a('v_mov_b32 v30, s60')
        a('v_cmp_eq_u32 vcc, 0, v0')
        a('s_and_saveexec_b64 s[62:63], vcc')
        a(f's_cbranch_execz {L("end")}')
        for i in range(3):
            a(f'buffer_store_dwordx4 v[{16+4*i}:{19+4*i}], v30, s[{SWS}:{SWS+3}], 0 offen offset:{16*i}')
    a('s_endpgm')

    a.label(L('aux'))
    vm = VM()
    a('s_lshl_b32 s61, s2, 14')
    a(f's_lshl_b32 s62, s{S_W4}, 12')
    a('s_add_u32 s61, s61, s62')
    a('v_lshlrev_b32 v6, 4, v1')
    a(f's_add_u32 m0, s62, {F1_LDS}')
    a('s_nop 0')
    for i in range(4):
        a(f'buffer_load_dwordx4 v6, s[{SX}:{SX+3}], s61 offen offset:{i*1024} lds'); vm.issue(('f1', 0))
    a(f's_cmp_lg_u32 s{S_WAVE}, 4')
    a(f's_cbranch_scc1 {L("noticket")}')
    a('s_mov_b64 exec, 1')
    if static_slot:
        a('s_and_b32 s61, s2, 7')
        a('s_lshr_b32 s62, s2, 3')
        a('s_lshl_b32 s63, s61, 5')
        a('s_add_u32 s63, s63, s62')
        a('s_lshl_b32 s62, 1, s60')
        a('v_mov_b32 v3, s62')
        a('s_lshl_b32 s62, s61, 5')
        a('s_add_u32 s62, s62, 20')
        a('v_mov_b32 v4, s62')
        a(f'buffer_atomic_or v3, v4, s[{SDBG}:{SDBG+3}], 0 offen')
        a('s_mov_b32 s60, s63')
    else:
        a('v_mov_b32 v3, 1')
        a('s_lshl_b32 s61, s60, 5')
        a('v_mov_b32 v4, s61')
        a(f'buffer_atomic_add v3, v4, s[{SDBG}:{SDBG+3}], 0 offen sc0')
    a('s_mov_b64 exec, -1')
    a.label(L('noticket'))
    VX = [8,9,10,11]; VW = [12,13,14,15,16,17,18]
    a('v_lshrrev_b32 v5, 3, v1')
    a('v_and_b32 v7, 7, v1')
    a('v_xor_b32 v7, v7, v5')
    a('v_lshlrev_b32 v7, 4, v7')
    a('v_lshlrev_b32 v5, 11, v5')
    a('v_add_u32 v5, v5, v7')
    a(f's_lshl_b32 s61, s{S_W4}, 16')
    for i in range(4):
        a(f's_add_u32 s62, s61, {i*8*2048 - i*1024}')
        a(f'v_add_u32 v{VX[i]}, s62, v5')
    a(f's_mul_i32 s61, s{S_W4}, 448')
    for i in range(7):
        a(f's_add_u32 s62, s61, {i*64}')
        a('v_add_u32 v5, s62, v1')
        a('v_mul_u32_u24 v7, 2341, v5')
        a('v_lshrrev_b32 v7, 16, v7')
        a('v_mul_u32_u24 v19, 28, v7')
        a('v_sub_u32 v19, v5, v19')
        a('v_bfe_u32 v5, v7, 3, 1')
        a('v_lshlrev_b32 v5, 1, v5')
        a('v_xor_b32 v19, v19, v5')
        a('v_lshlrev_b32 v19, 4, v19')
        a('v_mul_u32_u24 v7, 7168, v7')
        a('v_add_u32 v7, v7, v19')
        if i & 3:
            a(f'v_subrev_u32 v{VW[i]}, {(i&3)*1024}, v7')
        else:
            a(f'v_mov_b32 v{VW[i]}, v7')
    a(f's_cmp_lg_u32 s{S_WAVE}, 4')
    a(f's_cbranch_scc1 {L("noticket2")}')
    a('s_mov_b64 exec, 1')
    if not static_slot:
        a('s_waitcnt vmcnt(0)')
        a('v_readfirstlane_b32 s61, v3')
        a('s_cmp_lt_u32 s61, 32')
        a(f's_cbranch_scc1 {L("tick_ok")}')
        a('v_mov_b32 v3, 1')
        a('v_mov_b32 v4, 8')
        a(f'buffer_atomic_add v3, v4, s[{SDBG}:{SDBG+3}], 0 offen sc0')
        a('s_waitcnt vmcnt(0)')
        a('v_readfirstlane_b32 s64, v3')
        a('s_mov_b64 exec, 0xff')
        a('v_lshlrev_b32 v4, 5, v1')
        a('s_mov_b32 s76, 200000')
        a.label(L('ovf_poll'))
        a(f'buffer_load_dword v3, v4, s[{SDBG}:{SDBG+3}], 0 offen sc1')
        a('s_waitcnt vmcnt(0)')
        a('s_mov_b32 s65, 0')
        for j in range(8):
            a(f'v_readlane_b32 s{66+j}, v3, {j}')
        a('s_nop 3')
        for j in range(8):
            a(f's_add_u32 s65, s65, s{66+j}')
        a('s_cmp_lt_u32 s65, 256')
        a(f's_cbranch_scc0 {L("ovf_done")}')
        a('s_sub_u32 s76, s76, 1')
        a('s_cmp_eq_u32 s76, 0')
        a(f's_cbranch_scc1 {L("ovf_done")}')
        a('s_sleep 4')
        a(f's_branch {L("ovf_poll")}')
        a.label(L('ovf_done'))
        a('s_mov_b32 s60, 0')
        a('s_mov_b32 s61, 0')
        for j in range(8):
            lab = L(f'ovf_n{j}')
            a(f's_min_u32 s77, s{66+j}, 32')
            a('s_sub_u32 s78, 32, s77')
            a('s_cmp_lt_u32 s64, s78')
            a(f's_cbranch_scc0 {lab}')
            a(f's_mov_b32 s60, {j}')
            a('s_add_u32 s61, s77, s64')
            a(f's_branch {L("tick_ok")}')
            a.label(lab)
            a('s_sub_u32 s64, s64, s78')
        a.label(L('tick_ok'))
        a('s_mov_b64 exec, 1')
        a('s_lshl_b32 s60, s60, 5')
        a('s_add_u32 s60, s60, s61')
    a('v_mov_b32 v3, s60')
    a(f'v_mov_b32 v4, {SLOT_LDS}')
    a('ds_write_b32 v4, v3')
    a('s_waitcnt lgkmcnt(0)')
    a('s_mov_b64 exec, -1')
    a.label(L('noticket2'))
    a(f's_waitcnt vmcnt({vm.wait_for([("f1",0)])})')
    a('s_barrier')
    read_slot()
    a(f's_lshl_b32 s62, s{S_TM}, 18')
    a(f's_mul_i32 s63, s{S_TN}, 448')
    a(f's_mul_i32 s64, s{S_SX}, {rotx}')
    a(f's_lshl_b32 s65, s{S_W4}, 12')
    a(f's_mul_i32 s66, s{S_W4}, 7168')
    a(f's_add_u32 s66, s66, {G1_WB}')
    def g1_x(j):
        a(f's_add_u32 s67, s64, {j}')
        a('s_and_b32 s67, s67, 15')
        a('s_lshl_b32 s67, s67, 7')
        a('s_add_u32 s67, s67, s62')
        a(f's_add_u32 m0, s65, {G1_XB + (j % G1_NSX)*G1_XSZ}')
        a('s_nop 0')
        for i in range(4):
            a(f'buffer_load_dwordx4 v{VX[i]}, s[{SX}:{SX+3}], s67 offen offset:{i*1024} lds'); vm.issue(('x1', j))
    def g1_w(j):
        a(f's_add_u32 s67, s64, {j}')
        a('s_and_b32 s67, s67, 15')
        a(f's_mul_i32 s67, s67, {64*7168}')
        a('s_add_u32 s67, s67, s63')
        for i in range(7):
            if i in (0, 4):
                a(f's_add_u32 m0, s66, {(j % G1_NSW)*G1_WSZ + (4096 if i == 4 else 0)}')
                a('s_nop 0')
            a(f'buffer_load_dwordx4 v{VW[i]}, s[{SW1}:{SW1+3}], s67 offen offset:{(i&3)*1024} lds'); vm.issue(('w1', j))
    g1_x(0); g1_w(0); g1_x(1); g1_w(1)
    a(f's_and_b32 s67, s{S_IDX}, 1')
    a(f's_lshl_b32 s69, s{S_SX}, 5')
    a('s_lshl_b32 s70, s67, 4')
    a('s_add_u32 s69, s69, s70')
    a(f's_lshl_b32 s70, s{S_KH}, 3')
    a('s_add_u32 s70, s69, s70')
    a('v_add_u32 v20, s70, v1')
    a('v_lshlrev_b32 v20, 2, v20')
    a(f'v_add_u32 v20, {FH_OFF}, v20')
    a(f's_xor_b32 s70, s{S_SLOT}, 2')
    a('s_lshl_b32 s70, s70, 2')
    a(f's_add_u32 s70, s70, {FX_OFF}')
    a('v_writelane_b32 v20, s70, 8')
    a(f's_add_u32 s70, s69, s{S_TN}')
    a('s_lshl_b32 s70, s70, 2')
    a(f's_add_u32 s70, s70, {FH_OFF}')
    a('v_writelane_b32 v20, s70, 9')
    a(f's_lshl_b32 s70, s{S_SLOT}, 2')
    a(f's_add_u32 s70, s70, {FX_OFF}')
    a('v_writelane_b32 v20, s70, 10')
    a('s_mov_b64 exec, 0x7ff')
    a(f'buffer_load_dword v21, v20, s[{SWS}:{SWS+3}], 0 offen sc1'); vm.issue(('cap', 0))
    a('s_mov_b64 exec, -1')
    a('s_barrier')
    g1_x(2); g1_w(2)
    a('s_barrier')
    a(f's_waitcnt vmcnt({vm.wait_for([("x1",0),("w1",0),("cap",0)])})')
    a('v_add_u32 v21, 1, v21')
    a('s_barrier')
    a(f's_cmp_lg_u32 s{S_WAVE}, 4')
    a(f's_cbranch_scc1 {L("nordy")}')
    a('s_mov_b64 exec, 1')
    a('v_mov_b32 v22, 1')
    a('v_mov_b32 v23, 4')
    a(f'buffer_atomic_add v22, v23, s[{SDBG}:{SDBG+3}], 0 offen')
    a('s_mov_b64 exec, -1')
    a.label(L('nordy'))
    g1_w(3)
    for s in range(16):
        if s < 15:
            a(f's_waitcnt vmcnt({vm.wait_for([("x1",s+1),("w1",s+1)])})')
        if s == 13:
            a(f's_cmp_lg_u32 s{S_WAVE}, 4')
            a(f's_cbranch_scc1 {L("novp")}')
            a('s_mov_b64 exec, 0xff')
            a('v_lshlrev_b32 v23, 5, v1')
            poll_loop(a, L, 'vpoll', [f'buffer_load_dword v22, v23, s[{SDBG}:{SDBG+3}], 0 offen offset:12 sc1'],
                      ['v_cmp_ne_u32 vcc, 32, v22'])
            a('s_mov_b64 exec, 1')
            a('v_mov_b32 v23, 4')
            a(f'buffer_load_dwordx2 v[24:25], v23, s[{SDBG}:{SDBG+3}], 0 offen sc1')
            a('s_waitcnt vmcnt(0)')
            a('v_readfirstlane_b32 s61, v25')
            a(f's_mov_b32 s{S_MODE}, ' + ('1' if force_slow else 's61'))
            a('s_mov_b64 exec, -1')
            a.label(L('novp'))
        a('s_barrier')
        if s == 3:
            a(f's_cmp_lg_u32 s{S_WAVE}, 4')
            a(f's_cbranch_scc1 {L("novr")}')
            a('s_mov_b64 exec, 1')
            a('v_mov_b32 v22, 1')
            a('s_and_b32 s67, s2, 7')
            a('s_lshl_b32 s67, s67, 5')
            a('s_add_u32 s67, s67, 12')
            a('v_mov_b32 v23, s67')
            a(f'buffer_atomic_add v22, v23, s[{SDBG}:{SDBG+3}], 0 offen')
            a('s_mov_b64 exec, -1')
            a.label(L('novr'))
        if s + G1_NSX < 16: g1_x(s + G1_NSX)
        if s + G1_NSW < 16: g1_w(s + G1_NSW)
    a('s_lshl_b32 s61, s2, 14')
    a(f's_lshl_b32 s62, s{S_W4}, 12')
    a('s_add_u32 s61, s61, s62')
    a(f's_add_u32 s61, s61, {VB_OFF}')
    a(f's_add_u32 m0, s62, {F2_IN}')
    a('s_nop 0')
    for i in range(4):
        a(f'buffer_load_dwordx4 v6, s[{SWS}:{SWS+3}], s61 offen offset:{i*1024} sc1 lds'); vm.issue(('f2', 0))
    a('v_lshrrev_b32 v3, 3, v1')
    a('v_and_b32 v4, 7, v1')
    a('v_xor_b32 v4, v4, v3')
    a('v_lshlrev_b32 v4, 4, v4')
    a('v_mul_u32_u24 v3, 7168, v3')
    a('v_add_u32 v3, v3, v4')
    a(f's_mul_i32 s60, s{S_TM}, {128*7168}')
    a(f's_mul_i32 s61, s{S_W4}, {32*7168}')
    a('s_add_u32 s60, s60, s61')
    a(f's_mul_i32 s61, s{S_KH}, 3584')
    a('s_add_u32 s60, s60, s61')
    for i in range(4):
        a(f's_add_u32 s61, s60, {i*8*7168 - i*1024}')
        a(f'v_add_u32 v{VX[i]}, s61, v3')
    a('v_lshrrev_b32 v3, 4, v1')
    a('v_bfe_u32 v4, v1, 1, 3')
    a('v_xor_b32 v4, v4, v3')
    a('v_and_b32 v5, 1, v1')
    a('v_lshlrev_b32 v5, 4, v5')
    a('v_lshlrev_b32 v7, 11, v3')
    a('v_add_u32 v5, v5, v7')
    a(f's_lshl_b32 s60, s{S_N2}, 8')
    a(f's_lshl_b32 s61, s{S_W4}, 15')
    a('s_add_u32 s60, s60, s61')
    a(f's_mul_i32 s61, s{S_KH}, {1792*2048}')
    a('s_add_u32 s60, s60, s61')
    for i in range(4):
        a(f'v_xor_b32 v7, {(i>>1)<<2}, v4')
        a('v_lshlrev_b32 v7, 5, v7')
        a('v_add_u32 v7, v7, v5')
        a(f's_add_u32 s61, s60, {i*4*2048 - i*1024}')
        a(f'v_add_u32 v{VW[i]}, s61, v7')
    a(f's_lshl_b32 s65, s{S_W4}, 12')
    def g2_x(j):
        a(f's_mov_b32 s67, {j*128}')
        a(f's_add_u32 m0, s65, {G2_XB + (j % G2_NSX)*G2_XSZ}')
        a('s_nop 0')
        for i in range(4):
            a(f'buffer_load_dwordx4 v{VX[i]}, s[{SWS}:{SWS+3}], s67 offen offset:{i*1024} sc1 lds'); vm.issue(('x2', j))
    def g2_w(j):
        a(f's_mov_b32 s67, {j*64*2048}')
        a(f's_add_u32 m0, s65, {G2_WB + (j % G2_NSW)*G2_WSZ}')
        a('s_nop 0')
        for i in range(4):
            a(f'buffer_load_dwordx4 v{VW[i]}, s[{SW2}:{SW2+3}], s67 offen offset:{i*1024} lds'); vm.issue(('w2', j))
    for j in range(3): g2_w(j)
    a(f's_waitcnt vmcnt({vm.wait_for([("f2",0)])})')
    a('s_barrier')
    a(f's_cmp_lg_u32 s{S_WAVE}, 4')
    a(f's_cbranch_scc1 {L("nofl")}')
    a('s_mov_b64 exec, 0x200')
    a(f's_cmp_eq_u32 s{S_MODE}, 0')
    a(f's_cbranch_scc0 {L("fl1")}')
    a(f'buffer_store_dword v21, v20, s[{SWS}:{SWS+3}], 0 offen')
    a(f's_branch {L("fl2")}')
    a.label(L('fl1'))
    a(f'buffer_store_dword v21, v20, s[{SWS}:{SWS+3}], 0 offen sc1')
    a.label(L('fl2'))
    a('s_mov_b64 exec, -1')
    a.label(L('nofl'))
    a('s_barrier')
    a('s_mov_b64 exec, 0xff')
    poll_loop(a, L, 'hpoll', [f'buffer_load_dword v22, v20, s[{SWS}:{SWS+3}], 0 offen sc1'], ['v_cmp_ne_u32 vcc, v22, v21'])
    a('s_mov_b64 exec, -1')
    for j in range(G2_NSX): g2_x(j)
    a(f's_waitcnt vmcnt({vm.wait_for([("x2",0),("w2",0)])})')
    a('s_barrier')
    for j in range(3, G2_NSW): g2_w(j)
    for s in range(27):
        a(f's_waitcnt vmcnt({vm.wait_for([("x2",s+1),("w2",s+1)] + ([("y",0)] if s == 26 else []))})')
        if s == 20:
            a(f's_cmp_lg_u32 s{S_WAVE}, 4')
            a(f's_cbranch_scc1 {L("noyp")}')
            a('s_mov_b64 exec, 0xff')
            a('v_lshlrev_b32 v23, 5, v1')
            poll_loop(a, L, 'ypoll', [f'buffer_load_dword v22, v23, s[{SDBG}:{SDBG+3}], 0 offen offset:16 sc1'],
                      ['v_cmp_ne_u32 vcc, 32, v22'])
            a('s_mov_b64 exec, -1')
            a.label(L('noyp'))
        a('s_barrier')
        if s == 3:
            a(f's_cmp_lg_u32 s{S_WAVE}, 4')
            a(f's_cbranch_scc1 {L("noyr")}')
            a('s_mov_b64 exec, 1')
            a('v_mov_b32 v22, 1')
            a('s_and_b32 s67, s2, 7')
            a('s_lshl_b32 s67, s67, 5')
            a('s_add_u32 s67, s67, 16')
            a('v_mov_b32 v23, s67')
            a(f'buffer_atomic_add v22, v23, s[{SDBG}:{SDBG+3}], 0 offen')
            a('s_mov_b64 exec, -1')
            a.label(L('noyr'))
        if s + G2_NSX < 28: g2_x(s + G2_NSX)
        if s + G2_NSW < 28: g2_w(s + G2_NSW)
        if s == 20:
            a('v_lshrrev_b32 v3, 4, v1')
            a('v_lshlrev_b32 v3, 12, v3')
            a('v_and_b32 v4, 15, v1')
            a('v_lshlrev_b32 v4, 4, v4')
            a('v_add_u32 v3, v3, v4')
            a(f's_lshl_b32 s60, s{S_N2}, 7')
            a(f's_lshl_b32 s61, s{S_WN}, 6')
            a('s_add_u32 s60, s60, s61')
            a(f's_lshl_b32 s61, s{S_KH}, 5')
            a('s_add_u32 s60, s60, s61')
            a(f's_lshl_b32 s61, s{S_WM}, 4')
            a('s_add_u32 s60, s60, s61')
            a('s_lshl_b32 s60, s60, 12')
            a(f's_lshl_b32 s61, s{S_TM}, 8')
            a('s_add_u32 s60, s60, s61')
            a(f's_add_u32 s60, s60, {YT_OFF}')
            a(f's_add_u32 m0, s65, {YL}')
            for q in range(4):
                a(f's_add_u32 s61, s60, {q*4*4096 - q*1024}')
                a(f'buffer_load_dwordx4 v3, s[{SWS}:{SWS+3}], s61 offen offset:{q*1024} sc1 lds'); vm.issue(('y', 0))
    a('s_barrier')
    a(f's_cmp_lg_u32 s{S_WAVE}, 4')
    a(f's_cbranch_scc1 {L("nopoll2")}')
    a('s_mov_b64 exec, 0x400')
    a(f's_cmp_eq_u32 s{S_MODE}, 0')
    a(f's_cbranch_scc0 {L("fx1")}')
    a(f'buffer_store_dword v21, v20, s[{SWS}:{SWS+3}], 0 offen')
    a(f's_branch {L("fx2")}')
    a.label(L('fx1'))
    a(f'buffer_store_dword v21, v20, s[{SWS}:{SWS+3}], 0 offen sc1')
    a.label(L('fx2'))
    a('s_mov_b64 exec, 0x100')
    poll_loop(a, L, 'xpoll', [f'buffer_load_dword v22, v20, s[{SWS}:{SWS+3}], 0 offen sc1'], ['v_cmp_ne_u32 vcc, v22, v21'])
    a('s_mov_b64 exec, -1')
    a.label(L('nopoll2'))
    a('s_barrier')
    a.label(L('end'))
    a('s_endpgm')

def build(fn, **kw):
    a = Asm()
    K = NAME + '_kernel'
    hdr = HEADER_COMMENT + f"; @launch grid=(256,1,1) block=(512,1,1) lds=163840\n"
    a.raw('.amdgcn_target "amdgcn-amd-amdhsa--gfx950"')
    gen_mega(a, K, **kw)
    open(fn, 'w').write(hdr + a.text() + kernel_desc(K, 256, 102, 256))

if __name__ == '__main__':
    build('f1.s')
    build('f1s.s', stampon=True)
    build('f1i.s', stampon=True, itstamp=True)
```

```python
from gemm import *
import fft as F
from fft import CC, SC, NSC, cidx
from mega import VM, GemmM, stamp
from mega2 import poll_loop

H_OFF = 0x10000
VB_OFF = 0x1000000
YT_OFF = 0x1400000
G_OFF = 0x1800000
FH_OFF = 0x1810000
FX_OFF = 0x1811000
EX_OFF = 0x1900000
ST_OFF = 0x4000000
WS_WIN = 0x8000000

S_WAVE, S_W4, S_SLOT, S_SX, S_IDX = 3, 4, 5, 6, 7
SX, SW1, SW2, SWS, SOUT, SDBG, STMP = 8, 12, 16, 20, 24, 28, 32
P_W1, P_B1, P_W2, P_B2, P_GW, P_OUT, P_DBG, P_WS, P_X = 36, 38, 40, 42, 44, 46, 48, 50, 52
S_MODE = 54
S_TM, S_TN, S_WM, S_WN = 56, 57, 58, 59
S_KH, S_N2 = 74, 75
XS2 = 8448

G1_XB, G1_XSZ, G1_NSX = 0, 16384, 2
G1_WB, G1_WSZ, G1_NSW = 32768, 28672, 4
F_LDS = 147456
IMG_LDS = F_LDS
SLOT_LDS = 0
G2_XB, G2_XSZ, G2_NSX = 0, 16384, 3
G2_WB, G2_WSZ, G2_NSW = 49152, 16384, 5
YL = 131072
F2_EX = 0

Z = 40
TR, TI, TC, TS = 64, 80, 96, 112

def mf(d, aop, bop, c):
    cs = '0' if c is None else f'v[{c}:{c+15}]'
    return f'v_mfma_f32_32x32x16_bf16 v[{d}:{d+15}], v[{aop}:{aop+3}], v[{bop}:{bop+3}], {cs}'
def tr_loads(a, vb, mhs, jjs, ps):
    for p in range(2):
        for mh in range(2):
            for jj in range(2):
                R = Z + 8*p
                a(f'ds_read_b64_tr_b16 v[{R+4*mh+2*jj}:{R+4*mh+2*jj+1}], v{vb} offset:{p*ps + mh*mhs + jj*jjs}')
def stage(a, data_is_A):
    ZR_, ZI_ = Z, Z+8
    m = (lambda d, dat, con, c: mf(d, dat, con, c)) if data_is_A else (lambda d, dat, con, c: mf(d, con, dat, c))
    a(m(TR, ZR_, CC, None));      a(m(TI, ZI_, CC, None))
    a(m(TR, ZR_+4, CC+4, TR));    a(m(TI, ZI_+4, CC+4, TI))
    a(m(TR, ZI_, SC, TR));        a(m(TI, ZR_, NSC, TI))
    a(m(TR, ZI_+4, SC+4, TR));    a(m(TI, ZR_+4, NSC+4, TI))
def tw(a):
    for p in range(8):
        r = 2*p
        a(f'v_pk_mul_f32 v[2:3], v[{TI+r}:{TI+r+1}], v[{TS+r}:{TS+r+1}]')
        a(f'v_pk_mul_f32 v[4:5], v[{TR+r}:{TR+r+1}], v[{TS+r}:{TS+r+1}]')
        a(f'v_pk_fma_f32 v[{TR+r}:{TR+r+1}], v[{TR+r}:{TR+r+1}], v[{TC+r}:{TC+r+1}], v[2:3]')
        a(f'v_pk_fma_f32 v[{TI+r}:{TI+r+1}], v[{TI+r}:{TI+r+1}], v[{TC+r}:{TC+r+1}], v[4:5] neg_lo:[0,0,1] neg_hi:[0,0,1]')
        a(f'v_cvt_pk_bf16_f32 v{Z+p}, v{TR+r}, v{TR+r+1}')
        a(f'v_cvt_pk_bf16_f32 v{Z+8+p}, v{TI+r}, v{TI+r+1}')
    a('s_nop 1')
def mfma_wait(a):
    a('s_nop 7'); a('s_nop 7')

class GemmM2(GemmM):
    xs_mt = 2048
    def reads(self, kk, X, W):
        it = super().reads(kk, X, W)
        if self.xs_mt != 2048:
            it2 = []
            for ins in it:
                if ins.startswith('ds_read_b128'):
                    base, off = ins.rsplit('offset:', 1)
                    ins = base + f'offset:{int(off)//2048*self.xs_mt}'
                it2.append(ins)
            it = it2
        return it
    def body(self, nxt, bar=True, extraA=None):
        a = self.a
        n = 4*self.NT
        sc = Sched(a)
        its = getattr(self, 'its', None)
        if its:
            a('s_memtime s[98:99]')
            a('s_memrealtime s[100:101]')
        a('s_waitcnt lgkmcnt(0)')
        if its:
            a('s_mov_b32 m0, s73')
            a('s_add_u32 s73, s73, 1')
            a(f'v_writelane_b32 v{its}, s98, m0')
            a(f'v_writelane_b32 v{its+1}, s100, m0')
        bp = self.bar_pos
        nr = len(self.reads(1, self.X1, self.W1))
        rs = (nr + 1)//2 if self.dense else nr
        fa = spread(self.reads(1, self.X1, self.W1), 0, rs)
        adv = self.adv()
        fa = merge(fa, {rs: adv[:4], rs+1: adv[4:8], rs+2: adv[8:]})
        if bar:
            fa = merge(fa, {bp: ['s_waitcnt lgkmcnt(0)', 's_barrier']})
        else:
            fa = merge(fa, {n-1: ['s_waitcnt lgkmcnt(0)']})
        sc.run(self.mfmas(self.X0, self.W0), fa)
        fb = {}
        if nxt:
            fb = spread(self.reads(0, self.X0, self.W0), 0, rs)
        sc.run(self.mfmas(self.X1, self.W1), fb)

def gen_mega(a, name, stampon=False, itstamp=False, rotx=2, force_slow=False, pfw2=True, tlbwarm=False, prio=True, auxst=False, noystore=False, novstore=False, x2sc=' sc1', skipx2=False, skipw2=False, w2nt='', bp1=23, bp2=13, dense=True, pfn=8, pfmode='none', pfw1=True, rot2=True, delay=0, hsc='', preh=-1, prestride=128, preex=-1, svc_st=False, startst=False, prestart=False, rbstag=True, trig=-1, mtrig=True, novst=False, vplain=False, capafter=False, vwb=False, trig_always=False):
    L = lambda s: f'{name}_{s}'
    nbar = {'M': 0, 'A': 0}
    def bar(role):
        a('s_barrier'); nbar[role] += 1
    kernel_begin(a, name)
    stamp(a, stampon, 80)
    a('s_cmp_ge_u32 s2, 256')
    a(f's_cbranch_scc1 {L("end")}')
    a(f's_load_dwordx8 s[{P_W1}:{P_W1+7}], s[0:1], 48')
    a(f's_load_dwordx8 s[{P_GW}:{P_GW+7}], s[0:1], 80')
    a(f's_load_dwordx2 s[{P_X}:{P_X+1}], s[0:1], 0')
    a('s_getreg_b32 s60, hwreg(HW_REG_XCC_ID)')
    a('v_lshrrev_b32 v2, 6, v0')
    a('v_and_b32 v1, 63, v0')
    a(f'v_readfirstlane_b32 s{S_WAVE}, v2')
    a('s_and_b32 s60, s60, 7')
    a(f's_and_b32 s{S_W4}, s{S_WAVE}, 3')
    a(f's_and_b32 s{S_WM}, s{S_W4}, 1')
    a(f's_lshr_b32 s{S_WN}, s{S_W4}, 1')
    a('s_waitcnt lgkmcnt(0)')
    srd(a, SDBG, P_DBG, 256)
    srd(a, SX, P_X, 2048*1024*2)
    a('s_mov_b32 s96, s60')
    a(f's_and_b32 s{S_SX}, s2, 7')
    a(f's_lshr_b32 s{S_IDX}, s2, 3')
    a(f's_lshl_b32 s{S_SLOT}, s{S_SX}, 5')
    a(f's_add_u32 s{S_SLOT}, s{S_SLOT}, s{S_IDX}')
    a(f's_and_b32 s60, s{S_IDX}, 1')
    a(f's_lshl_b32 s{S_TM}, s{S_SX}, 1')
    a(f's_add_u32 s{S_TM}, s{S_TM}, s60')
    a(f's_lshr_b32 s{S_TN}, s{S_IDX}, 1')
    a(f's_bfe_u32 s{S_KH}, s{S_IDX}, 0x10001')
    a(f's_lshr_b32 s{S_N2}, s{S_IDX}, 2')
    a(f's_cmp_ge_u32 s{S_WAVE}, 4')
    a(f's_cbranch_scc1 {L("aux0")}')
    a(f's_lshl_b32 s61, s{S_SLOT}, 14')
    a(f's_lshl_b32 s62, s{S_W4}, 12')
    a('s_add_u32 s61, s61, s62')
    a('v_lshlrev_b32 v6, 4, v1')
    a(f's_add_u32 m0, s62, {F_LDS}')
    a('s_nop 0')
    for i in range(4):
        a(f'buffer_load_dwordx4 v6, s[{SX}:{SX+3}], s61 offen offset:{i*1024} lds')
    a.label(L('aux0'))
    srd(a, SW1, P_W1, 1024*3584*2)
    srd(a, SW2, P_W2, 3584*1024*2)
    npf = 0
    if pfmode == 'entry':
        a(f's_cmp_ge_u32 s{S_WAVE}, 4')
        a(f's_cbranch_scc1 {L("aux1")}')
        a('s_mul_i32 s60, s2, 28672')
        a(f's_lshl_b32 s61, s{S_W4}, 13')
        a('s_add_u32 s60, s60, s61')
        a('s_add_u32 s61, s60, 4096')
        a('v_lshlrev_b32 v3, 6, v1')
        if pfw1:
            a(f'buffer_load_dword v174, v3, s[{SW1}:{SW1+3}], s60 offen')
            a(f'buffer_load_dword v175, v3, s[{SW1}:{SW1+3}], s61 offen')
            npf += 2
        if pfw2:
            a(f'buffer_load_dword v176, v3, s[{SW2}:{SW2+3}], s60 offen')
            a(f'buffer_load_dword v177, v3, s[{SW2}:{SW2+3}], s61 offen')
            npf += 2
        a.label(L('aux1'))
    srd(a, SWS, P_WS, WS_WIN)
    srd(a, SOUT, P_OUT, 2048*1024*2)
    a(f's_cmp_ge_u32 s{S_WAVE}, 4')
    a(f's_cbranch_scc1 {L("aux")}')

    def read_slot():
        a(f'v_mov_b32 v4, {SLOT_LDS}')
        a('ds_read_b32 v3, v4')
        a('s_waitcnt lgkmcnt(0)')
        a(f'v_readfirstlane_b32 s{S_SLOT}, v3')
        a(f's_lshr_b32 s{S_SX}, s{S_SLOT}, 5')
        a(f's_and_b32 s{S_IDX}, s{S_SLOT}, 31')
        a(f's_and_b32 s60, s{S_IDX}, 1')
        a(f's_lshl_b32 s{S_TM}, s{S_SX}, 1')
        a(f's_add_u32 s{S_TM}, s{S_TM}, s60')
        a(f's_lshr_b32 s{S_TN}, s{S_IDX}, 1')
        a(f's_bfe_u32 s{S_KH}, s{S_IDX}, 0x10001')
        a(f's_lshr_b32 s{S_N2}, s{S_IDX}, 2')

    if prio: a('s_setprio 2')
    srd(a, STMP, P_GW, 2048)
    a('v_lshlrev_b32 v7, 5, v1')
    a(f'buffer_load_dwordx4 v[128:131], v7, s[{STMP}:{STMP+3}], 0 offen')
    a(f'buffer_load_dwordx4 v[132:135], v7, s[{STMP}:{STMP+3}], 0 offen offset:16')
    F.gen_consts(a, 1)
    F.gen_twiddle(a, 1)
    a(f's_lshl_b32 s61, s{S_W4}, 12')
    a(f's_add_u32 s61, s61, {F_LDS}')
    a('v_lshrrev_b32 v2, 5, v1')
    a('v_bfe_u32 v3, v1, 2, 2')
    a('v_lshl_add_u32 v2, v2, 2, v3')
    a('v_lshlrev_b32 v2, 6, v2')
    a('v_bfe_u32 v3, v1, 4, 1')
    a('v_lshlrev_b32 v3, 5, v3')
    a('v_and_b32 v4, 3, v1')
    a('v_lshlrev_b32 v4, 3, v4')
    a('v_add3_u32 v8, v2, v3, v4')
    a('v_add_u32 v8, s61, v8')
    a('v_lshlrev_b32 v9, 5, v1')
    a('v_add_u32 v9, s61, v9')
    a('v_and_b32 v2, 31, v1')
    a('v_lshlrev_b32 v2, 4, v2')
    a('v_lshrrev_b32 v3, 5, v1')
    a('v_lshlrev_b32 v3, 11, v3')
    a(f's_lshl_b32 s60, s{S_W4}, 2')
    a(f's_add_u32 s60, s60, {IMG_LDS}')
    a('v_add3_u32 v10, v2, v3, s60')
    stamp(a, stampon, 82)
    X0, W0, X1, W1 = 16, 32, 64, 80
    ACC = 128
    VX0, VX1, VWA, VWB, VWC, VWD = 240, 241, 242, 243, 244, 245
    srd(a, STMP, P_B1, 3584*2)
    a('v_lshrrev_b32 v7, 4, v1')
    a('v_lshlrev_b32 v7, 3, v7')
    a(f's_mul_i32 s60, s{S_TN}, 448')
    a(f's_mul_i32 s61, s{S_WN}, 224')
    a('s_add_u32 s60, s60, s61')
    BI = 160
    for nt in range(7):
        a(f'buffer_load_dwordx2 v[{BI+2*nt}:{BI+2*nt+1}], v7, s[{STMP}:{STMP+3}], s60 offen offset:{nt*32}')
    srd(a, STMP, P_B2, 2048)
    a(f's_lshl_b32 s60, s{S_N2}, 8')
    a(f's_lshl_b32 s61, s{S_WN}, 7')
    a('s_add_u32 s60, s60, s61')
    a(f's_lshl_b32 s61, s{S_KH}, 6')
    a('s_add_u32 s60, s60, s61')
    BT = 246
    for j in range(2):
        a(f'buffer_load_dwordx2 v[{BT+2*j}:{BT+2*j+1}], v7, s[{STMP}:{STMP+3}], s60 offen offset:{j*32}')
    a(f's_waitcnt vmcnt({9+2+npf})')
    if startst: a('s_memrealtime s[90:91]')
    tr_loads(a, 8, 16*64, 8*64, 2048)
    a('ds_read_b128 v[136:139], v9')
    a('ds_read_b128 v[140:143], v9 offset:16')
    a('ds_read_b128 v[144:147], v9 offset:2048')
    a('ds_read_b128 v[148:151], v9 offset:2064')
    a('s_waitcnt lgkmcnt(4)')
    stage(a, True)
    a('s_waitcnt vmcnt(9) lgkmcnt(0)')
    bar('M')
    a('v_mov_b32 v152, 0'); a('v_mov_b32 v153, 0')
    for i in range(8):
        a(f'v_dot2_f32_bf16 v152, v{136+i}, v{128+i}, v152')
        a(f'v_dot2_f32_bf16 v153, v{144+i}, v{128+i}, v153')
    for ctl in ['row_shr:1 row_mask:0xf', 'row_shr:2 row_mask:0xf', 'row_shr:4 row_mask:0xf', 'row_shr:8 row_mask:0xf', 'row_bcast:15 row_mask:0xa', 'row_bcast:31 row_mask:0xc']:
        a('s_nop 1')
        a(f'v_add_f32_dpp v152, v152, v152 {ctl} bank_mask:0xf')
        a(f'v_add_f32_dpp v153, v153, v153 {ctl} bank_mask:0xf')
    tw(a)
    stage(a, False)
    for r in (152, 153):
        a(f'v_mul_f32 v{r}, 0xbfb8aa3b, v{r}')
        a(f'v_exp_f32 v{r}, v{r}')
        a('s_nop 0')
        a(f'v_add_f32 v{r}, 1.0, v{r}')
        a(f'v_rcp_f32 v{r}, v{r}')
    a(f's_lshl_b32 s60, s{S_SLOT}, 5')
    a(f's_lshl_b32 s61, s{S_W4}, 3')
    a('s_add_u32 s60, s60, s61')
    a(f's_add_u32 s60, s60, {G_OFF}')
    a('v_mov_b32 v11, s60')
    a('v_cmp_eq_u32 vcc, 63, v1')
    a('s_and_saveexec_b64 s[62:63], vcc')
    a(f'buffer_store_dwordx2 v[152:153], v11, s[{SWS}:{SWS+3}], 0 offen sc1')
    a('s_mov_b64 exec, s[62:63]')
    a('s_nop 4')
    for r in range(16):
        a(f'v_cvt_pk_bf16_f32 v{Z+r}, v{TR+r}, v{TI+r}')
        a(f'ds_write_b32 v10, v{Z+r} offset:{512*cidx(r)}')
    a('s_waitcnt lgkmcnt(0)')
    if startst: a('s_memrealtime s[92:93]')
    g1 = GemmM2(a, 'g1', 7, ACC, X0, W0, X1, W1, [VX0, VX1], [VWA, VWB],
               lambda nt: (VWA if nt % 2 == 0 else VWB, nt*32), 32*448, 4*448, G1_NSX, G1_XSZ, G1_NSW, G1_WSZ, 16, 64, bp1)
    g1.dense = dense
    def xaddr():
        a('v_and_b32 v3, 15, v1')
        a('v_lshrrev_b32 v7, 4, v1')
        a('v_and_b32 v15, 7, v1')
        a('v_xor_b32 v15, v15, v7')
        a('v_lshlrev_b32 v15, 4, v15')
        a(f's_lshl_b32 s60, s{S_WM}, 13')
        a('v_lshlrev_b32 v4, 7, v3')
        a('v_add_u32 v4, v4, v15')
        a(f'v_add_u32 v{VX0}, s60, v4')
        a(f'v_xor_b32 v{VX1}, 64, v{VX0}')
    xaddr()
    a('v_bfe_u32 v15, v1, 2, 2')
    a('v_lshl_add_u32 v15, v7, 3, v15')
    a('v_mul_u32_u24 v15, 448, v15')
    a('v_and_b32 v5, 3, v1')
    a('v_lshl_add_u32 v15, v5, 3, v15')
    a('v_and_b32 v6, 1, v7')
    a('v_lshlrev_b32 v6, 5, v6')
    a(f's_mul_i32 s60, s{S_WN}, 224')
    a(f's_add_u32 s60, s60, {G1_WB}')
    a('v_add_u32 v15, s60, v15')
    a('v_add_u32 v13, v15, v6')
    a('v_sub_u32 v14, v15, v6')
    a(f's_cmp_eq_u32 s{S_WN}, 0')
    a('s_cselect_b64 vcc, -1, 0')
    a('s_nop 1')
    a(f'v_cndmask_b32 v{VWA}, v14, v13, vcc')
    a(f'v_cndmask_b32 v{VWB}, v13, v14, vcc')
    g1.init_state()
    a('s_waitcnt vmcnt(1)')
    for i in range(14): a(f'v_mov_b32 v{96+i}, v{BI+i}')
    for nt in range(7):
        r0 = 96+2*nt
        A0 = g1.acc(0,nt)
        a(f'v_lshlrev_b32 v{A0}, 16, v{r0}')
        a(f'v_and_b32 v{A0+1}, 0xffff0000, v{r0}')
        a(f'v_lshlrev_b32 v{A0+2}, 16, v{r0+1}')
        a(f'v_and_b32 v{A0+3}, 0xffff0000, v{r0+1}')
        for mt in range(1,4):
            for r in range(4):
                a(f'v_mov_b32 v{g1.acc(mt,nt)+r}, v{A0+r}')
    if itstamp:
        g1.its = 254
        a('s_mov_b32 s73, 0')
    if startst: a('s_memrealtime s[94:95]')
    bar('M')
    if startst:
        a('s_waitcnt lgkmcnt(0)')
        a('v_mov_b32 v16, s90'); a('v_mov_b32 v17, s92'); a('v_mov_b32 v18, s94'); a('v_mov_b32 v19, s80')
        a(f's_lshl_b32 s60, s{S_SLOT}, 6')
        a(f's_add_u32 s60, s60, {ST_OFF + 0x180000}')
        a('v_mov_b32 v20, s60')
        a(f's_cmp_lg_u32 s{S_WAVE}, 0')
        a(f's_cbranch_scc1 {L("sst1")}')
        a('s_mov_b64 exec, 1')
        a(f'buffer_store_dwordx4 v[16:19], v20, s[{SWS}:{SWS+3}], 0 offen')
        a('s_mov_b64 exec, -1')
        a.label(L('sst1'))
    stamp(a, stampon, 84)
    for ins in g1.reads(0, X0, W0): a(ins)
    a('s_mov_b32 s72, 15')
    a('s_mov_b32 s79, 12')
    a.label(L('g1loop'))
    a('s_cmp_eq_u32 s72, s79')
    a(f's_cbranch_scc1 {L("g1evt")}')
    a.label(L('g1back'))
    g1.body(True); nbar['M'] += 15
    a('s_sub_u32 s72, s72, 1')
    a('s_cmp_lg_u32 s72, 0')
    a(f's_cbranch_scc1 {L("g1loop")}')
    a(f's_lshl_b32 s60, s{S_SX}, 5')
    a('v_mov_b32 v8, s60')
    a(f'buffer_load_dwordx2 v[10:11], v8, s[{SDBG}:{SDBG+3}], 0 offen sc1')
    g1.body(False, bar=True); nbar['M'] += 1
    stamp(a, stampon, 86)
    def dump_its(reg, off):
        a(f's_lshl_b32 s60, s{S_SLOT}, 9')
        a(f's_add_u32 s60, s60, {ST_OFF + off}')
        a('v_lshlrev_b32 v3, 2, v1')
        a(f's_cmp_lg_u32 s{S_WAVE}, 0')
        lab = L(f'dumpskip{reg}_{off}')
        a(f's_cbranch_scc1 {lab}')
        a(f'buffer_store_dword v{reg}, v3, s[{SWS}:{SWS+3}], s60 offen')
        a(f'buffer_store_dword v{reg+1}, v3, s[{SWS}:{SWS+3}], s60 offen offset:256')
        a.label(lab)
    if itstamp: dump_its(254, 0x10000)
    a('s_mov_b32 s76, 200000')
    a.label(L('modechk'))
    a('s_waitcnt vmcnt(0)')
    a('v_readfirstlane_b32 s60, v10')
    a('v_readfirstlane_b32 s61, v11')
    a('s_mov_b32 s62, 0')
    a('s_mov_b32 s63, 1')
    for j in range(8):
        a(f's_lshr_b64 s[68:69], s[60:61], {6*j}')
        a('s_and_b32 s68, s68, 63')
        a('s_add_u32 s62, s62, s68')
        a('s_cmp_eq_u32 s68, 32')
        a('s_cselect_b32 s63, 0, s63')
    a('s_mov_b32 s61, s63')
    a('s_cmp_eq_u32 s62, 32')
    a(f's_cbranch_scc1 {L("modeok")}')
    a('s_sub_u32 s76, s76, 1')
    a('s_cmp_eq_u32 s76, 0')
    a(f's_cbranch_scc1 {L("modeok")}')
    a('s_sleep 2')
    a(f'buffer_load_dwordx2 v[10:11], v8, s[{SDBG}:{SDBG+3}], 0 offen sc1')
    a(f's_branch {L("modechk")}')
    a.label(L('modeok'))
    a(f's_mov_b32 s{S_MODE}, ' + ('1' if force_slow else 's61'))
    a(f'v_mov_b32 v8, {YL}')
    a(f'v_mov_b32 v9, s{S_MODE}')
    a('ds_write_b32 v8, v9')
    a('v_and_b32 v3, 15, v1')
    a('v_lshrrev_b32 v7, 4, v1')
    a(f's_lshl_b32 s60, s{S_TM}, 7')
    a(f's_lshl_b32 s61, s{S_WM}, 6')
    a('s_add_u32 s60, s60, s61')
    ROW = 254 if not itstamp else 239
    a(f'v_add_u32 v12, s60, v3')
    a('v_and_b32 v8, 1, v7')
    a('v_lshrrev_b32 v9, 1, v7')
    a('v_lshlrev_b32 v3, 4, v3')
    a('v_lshl_add_u32 v10, v8, 1, v9')
    a('v_lshl_add_u32 v10, v10, 11, v3')
    a('v_lshlrev_b32 v9, 11, v9')
    a('v_lshlrev_b32 v8, 8, v8')
    a('v_add3_u32 v11, v9, v8, v3')
    a(f's_mul_i32 s62, s{S_TM}, 917504')
    a(f's_mul_i32 s60, s{S_TN}, {28*2048}')
    a('s_add_u32 s62, s62, s60')
    a(f's_mul_i32 s60, s{S_WN}, {14*2048}')
    a('s_add_u32 s62, s62, s60')
    a(f's_lshl_b32 s60, s{S_WM}, 10')
    a('s_add_u32 s62, s62, s60')
    a(f's_add_u32 s62, s62, {H_OFF}')
    def epi1(sc):
        grp = 0
        def emit_pair(P, Q, addr, soff, off):
            nonlocal grp
            R = 16 + 4*grp; grp += 1
            for base in (P, Q):
                for r in range(4):
                    a(f'v_mul_f32 v{base+r}, v{base+r}, |v{base+r}|')
            a(f'v_cvt_pk_bf16_f32 v{R}, v{P}, v{P+1}')
            a(f'v_cvt_pk_bf16_f32 v{R+1}, v{P+2}, v{P+3}')
            a(f'v_cvt_pk_bf16_f32 v{R+2}, v{Q}, v{Q+1}')
            a(f'v_cvt_pk_bf16_f32 v{R+3}, v{Q+2}, v{Q+3}')
            for r in range(4):
                a(f'v_pk_max_i16 v{R+r}, v{R+r}, 0')
            a(f's_add_u32 s60, s62, {soff}')
            a('s_nop 0')
            a(f'v_permlane16_swap_b32 v{R}, v{R+2}')
            a(f'v_permlane16_swap_b32 v{R+1}, v{R+3}')
            a(f'buffer_store_dwordx4 v[{R}:{R+3}], v{addr}, s[{SWS}:{SWS+3}], s60 offen offset:{off}{sc}')
        for mt in range(4):
            for p in range(3):
                emit_pair(g1.acc(mt,2*p), g1.acc(mt,2*p+1), 10, p*8192, mt*256)
        for mp in range(2):
            emit_pair(g1.acc(2*mp,6), g1.acc(2*mp+1,6), 11, 12*2048, mp*512)
    a(f's_cmp_eq_u32 s{S_MODE}, 0')
    a(f's_cbranch_scc0 {L("epi_slow")}')
    epi1(hsc)
    ntrig = 0
    def trigloads():
        a('v_lshrrev_b32 v3, 3, v1')
        a('v_and_b32 v4, 7, v1')
        a('v_lshlrev_b32 v3, 11, v3')
        a('v_lshl_add_u32 v3, v4, 7, v3')
        a(f'buffer_load_dword v126, v3, s[{SWS}:{SWS+3}], s62 offen')
        a('s_add_u32 s60, s62, 16384')
        a('s_mov_b32 exec_hi, 0xffff')
        a(f'buffer_load_dword v127, v3, s[{SWS}:{SWS+3}], s60 offen')
        a('s_mov_b64 exec, -1')
    if mtrig:
        ntrig = 2
        if not trig_always: trigloads()
    a(f's_branch {L("epi_done")}')
    a.label(L('epi_slow'))
    epi1(' sc1')
    if not trig_always: a('s_waitcnt vmcnt(0)')
    a.label(L('epi_done'))
    if mtrig and trig_always: trigloads()
    stamp(a, stampon and not itstamp, 98)
    a(f'v_mov_b32 v{ROW}, v12')
    GR = 250
    a('v_lshlrev_b32 v9, 2, v12')
    a(f's_mov_b32 s60, {G_OFF}')
    for mt in range(4):
        a(f'buffer_load_dword v{GR+mt}, v9, s[{SWS}:{SWS+3}], s60 offen offset:{mt*64} sc1')
    X0b, W0b, X1b, W1b = 16, 32, 64, 80
    ACC2 = 128
    g2 = GemmM2(a, 'g2', 4, ACC2, X0b, W0b, X1b, W1b, [VX0, VX1], [VWA, VWB, VWC, VWD],
               lambda nt: ([VWA, VWB, VWC, VWD][nt], 0), 32*256, 4*256, G2_NSX, G2_XSZ, G2_NSW, G2_WSZ, 28, 64, bp2)
    g2.dense = dense
    g2.xs_mt = 256
    a('v_and_b32 v3, 15, v1')
    a('v_lshrrev_b32 v7, 4, v1')
    a('v_lshlrev_b32 v4, 4, v3')
    a('v_lshl_add_u32 v4, v7, 11, v4')
    a(f's_lshl_b32 s60, s{S_WM}, 10')
    a(f'v_add_u32 v{VX0}, s60, v4')
    a(f'v_add_u32 v{VX1}, 8192, v{VX0}')
    a('v_bfe_u32 v15, v1, 2, 2')
    a('v_lshl_add_u32 v9, v7, 3, v15')
    a('v_lshlrev_b32 v9, 8, v9')
    a('v_and_b32 v8, 1, v7')
    a('v_lshl_or_b32 v15, v8, 2, v15')
    a(f's_lshl_b32 s60, s{S_WN}, 2')
    a('v_xor_b32 v15, s60, v15')
    a('v_lshlrev_b32 v15, 5, v15')
    a('v_and_b32 v8, 3, v1')
    a('v_lshlrev_b32 v8, 3, v8')
    a(f'v_add3_u32 v{VWA}, v9, v15, v8')
    a(f'v_add_u32 v{VWA}, {G2_WB}, v{VWA}')
    a(f'v_xor_b32 v{VWB}, 32, v{VWA}')
    a(f'v_xor_b32 v{VWC}, 64, v{VWA}')
    a(f'v_xor_b32 v{VWD}, 96, v{VWA}')
    a(f's_waitcnt vmcnt({4+ntrig}) lgkmcnt(0)')
    bar('M')
    stamp(a, stampon, 88)
    for khv in range(2):
        if khv == 0:
            a(f's_cmp_eq_u32 s{S_KH}, 0')
            a(f's_cbranch_scc0 {L("ini1")}')
        else:
            a.label(L('ini1'))
        for nt in range(4):
            A0 = g2.acc(0, nt)
            if nt // 2 == khv:
                r0 = BT + 2*(nt & 1)
                a(f'v_lshlrev_b32 v{A0}, 16, v{r0}')
                a(f'v_and_b32 v{A0+1}, 0xffff0000, v{r0}')
                a(f'v_lshlrev_b32 v{A0+2}, 16, v{r0+1}')
                a(f'v_and_b32 v{A0+3}, 0xffff0000, v{r0+1}')
                for mt in range(1,4):
                    for r in range(4):
                        a(f'v_mov_b32 v{g2.acc(mt,nt)+r}, v{A0+r}')
            else:
                for mt in range(4):
                    for r in range(4):
                        a(f'v_mov_b32 v{g2.acc(mt,nt)+r}, 0')
        if khv == 0:
            a(f's_branch {L("ini2")}')
    a.label(L('ini2'))
    g2.init_state()
    bar('M')
    if itstamp:
        g2.its = 200
        a('s_mov_b32 s73, 0')
    bar('M')
    stamp(a, stampon, 90)
    for ins in g2.reads(0, X0b, W0b): a(ins)
    a('s_mov_b32 s72, 27')
    a('s_mov_b32 s79, 18')
    a.label(L('g2loop'))
    a('s_cmp_eq_u32 s72, s79')
    a(f's_cbranch_scc1 {L("g2evt")}')
    a.label(L('g2back'))
    g2.body(True); nbar['M'] += 27
    a('s_sub_u32 s72, s72, 1')
    a('s_cmp_lg_u32 s72, 0')
    a(f's_cbranch_scc1 {L("g2loop")}')
    g2.body(False, bar=False)
    stamp(a, stampon, 92)
    if itstamp: dump_its(200, 0x40000)
    a('s_nop 7')
    a(f's_xor_b32 s60, s{S_SLOT}, 2')
    a('s_lshl_b32 s60, s60, 14')
    a(f's_lshl_b32 s61, s{S_W4}, 12')
    a('s_add_u32 s60, s60, s61')
    a(f's_add_u32 s60, s60, {VB_OFF}')
    a('v_lshlrev_b32 v8, 4, v1')
    for khv in range(2):
        if khv == 0:
            a(f's_cmp_eq_u32 s{S_KH}, 0')
            a(f's_cbranch_scc0 {L("pk1")}')
        else:
            a.label(L('pk1'))
        for i in range(8):
            nt = 2*(1-khv) + (i >> 2); mt = i & 3
            A0 = g2.acc(mt, nt)
            a(f'v_cvt_pk_bf16_f32 v{96+2*i}, v{A0}, v{A0+1}')
            a(f'v_cvt_pk_bf16_f32 v{97+2*i}, v{A0+2}, v{A0+3}')
        if khv == 0: a(f's_branch {L("pk2")}')
    a.label(L('pk2'))
    a(f's_cmp_eq_u32 s{S_MODE}, 0')
    a(f's_cbranch_scc0 {L("exs")}')
    for i in range(4):
        a(f'buffer_store_dwordx4 v[{96+4*i}:{99+4*i}], v8, s[{SWS}:{SWS+3}], s60 offen offset:{i*1024}')
    a(f's_branch {L("exdone")}')
    a.label(L('exs'))
    for i in range(4):
        a(f'buffer_store_dwordx4 v[{96+4*i}:{99+4*i}], v8, s[{SWS}:{SWS+3}], s60 offen offset:{i*1024} sc1')
    a.label(L('exdone'))
    a('v_lshrrev_b32 v7, 4, v1')
    a('v_bfe_u32 v15, v1, 2, 2')
    a('v_lshl_add_u32 v15, v7, 2, v15')
    a(f's_lshl_b32 s61, s{S_WN}, 5')
    a('v_add_u32 v15, s61, v15')
    a('v_lshlrev_b32 v15, 8, v15')
    a('v_and_b32 v3, 3, v1')
    a('v_lshlrev_b32 v3, 3, v3')
    a(f's_lshl_b32 s61, s{S_WM}, 7')
    a(f's_add_u32 s61, s61, {YL}')
    a('v_add3_u32 v15, v15, v3, s61')
    YR = 16
    for j in range(2):
        for mt in range(4):
            i = j*4+mt
            a(f'ds_read_b64_tr_b16 v[{YR+2*i}:{YR+2*i+1}], v15 offset:{j*4096 + mt*32}')
    OM = 84
    for mt in range(4):
        a(f'v_sub_f32 v{OM+mt}, 1.0, v{GR+mt}')
        a(f'v_mul_f32 v{GR+mt}, 0.5, v{GR+mt}')
    a(f'v_lshlrev_b32 v9, 11, v{ROW}')
    a(f's_lshl_b32 s61, s{S_N2}, 8')
    a(f's_lshl_b32 s62, s{S_WN}, 7')
    a('s_add_u32 s61, s61, s62')
    a(f's_lshl_b32 s62, s{S_KH}, 6')
    a('s_add_u32 s61, s61, s62')
    a('v_and_b32 v10, 1, v7')
    a('v_lshlrev_b32 v10, 5, v10')
    a('v_lshrrev_b32 v11, 1, v7')
    a('v_lshlrev_b32 v11, 4, v11')
    a('v_add3_u32 v10, v10, v11, s61')
    a('v_add_u32 v9, v9, v10')
    K0 = 192
    for khv in range(2):
        if khv == 0:
            a(f's_cmp_eq_u32 s{S_KH}, 0')
            a(f's_cbranch_scc0 {L("kp1")}')
        else:
            a.label(L('kp1'))
        for i in range(8):
            nt = 2*khv + (i >> 2); mt = i & 3
            for r in range(4):
                a(f'v_mov_b32 v{K0+4*i+r}, v{g2.acc(mt,nt)+r}')
        if khv == 0: a(f's_branch {L("kp2")}')
    a.label(L('kp2'))
    a('s_waitcnt lgkmcnt(0)')
    for mt in range(4):
        for j in range(2):
            i = j*4 + mt
            A = K0 + 4*i
            y0, y1 = YR+2*i, YR+2*i+1
            a(f'v_lshlrev_b32 v32, 16, v{y0}')
            a(f'v_and_b32 v33, 0xffff0000, v{y0}')
            a(f'v_lshlrev_b32 v34, 16, v{y1}')
            a(f'v_and_b32 v35, 0xffff0000, v{y1}')
            for r in range(4):
                a(f'v_mul_f32 v{A+r}, v{A+r}, v{OM+mt}')
            for r in range(4):
                a(f'v_fma_f32 v{A+r}, v{32+r}, v{GR+mt}, v{A+r}')
    a('s_waitcnt vmcnt(0)')
    bar('M')
    bar('M')
    stamp(a, stampon, 94)
    a(f's_lshl_b32 s60, s{S_SLOT}, 14')
    a(f's_lshl_b32 s61, s{S_W4}, 12')
    a('s_add_u32 s60, s60, s61')
    a(f's_add_u32 s60, s60, {VB_OFF}')
    RX = 112
    for i in range(4):
        a(f'buffer_load_dwordx4 v[{RX+4*i}:{RX+4*i+3}], v8, s[{SWS}:{SWS+3}], s60 offen offset:{i*1024} sc1')
    a('s_waitcnt vmcnt(0)')
    for mt in range(4):
        for j in range(2):
            i = j*4 + mt
            A = K0 + 4*i
            r0 = RX + 2*i
            a(f'v_lshlrev_b32 v32, 16, v{r0}')
            a(f'v_and_b32 v33, 0xffff0000, v{r0}')
            a(f'v_lshlrev_b32 v34, 16, v{r0+1}')
            a(f'v_and_b32 v35, 0xffff0000, v{r0+1}')
            for r in range(4):
                a(f'v_fma_f32 v{A+r}, v{32+r}, v{OM+mt}, v{A+r}')
        R = 40 + 4*mt
        Pp, Q = K0 + 4*mt, K0 + 4*(4+mt)
        a(f'v_cvt_pk_bf16_f32 v{R}, v{Pp}, v{Pp+1}')
        a(f'v_cvt_pk_bf16_f32 v{R+1}, v{Pp+2}, v{Pp+3}')
        a(f'v_cvt_pk_bf16_f32 v{R+2}, v{Q}, v{Q+1}')
        a(f'v_cvt_pk_bf16_f32 v{R+3}, v{Q+2}, v{Q+3}')
        a('s_nop 1')
        a(f'v_permlane16_swap_b32 v{R}, v{R+2}')
        a(f'v_permlane16_swap_b32 v{R+1}, v{R+3}')
        a(f's_mov_b32 s60, {mt*16*2048}')
        a(f'buffer_store_dwordx4 v[{R}:{R+3}], v9, s[{SOUT}:{SOUT+3}], s60 offen')
    if stampon:
        a('s_waitcnt vmcnt(0)')
        stamp(a, True, 96)
        a('s_waitcnt lgkmcnt(0)')
        for i in range(10):
            a(f'v_mov_b32 v{16+i}, s{80+2*i}')
        for i in range(10, 12): a(f'v_mov_b32 v{16+i}, 0')
        a(f's_lshl_b32 s60, s{S_SLOT}, 6')
        a(f's_add_u32 s60, s60, {ST_OFF}')
        a('v_mov_b32 v30, s60')
        a('v_cmp_eq_u32 vcc, 0, v0')
        a('s_and_saveexec_b64 s[62:63], vcc')
        a(f's_cbranch_execz {L("end")}')
        for i in range(3):
            a(f'buffer_store_dwordx4 v[{16+4*i}:{19+4*i}], v30, s[{SWS}:{SWS+3}], 0 offen offset:{16*i}')
    a('s_endpgm')
    def w0_atomic(off_code, tag):
        a(f's_cmp_lg_u32 s{S_WAVE}, 0')
        a(f's_cbranch_scc1 {L(tag)}')
        a('s_mov_b64 exec, 1')
        a('v_mov_b32 v8, 1')
        for i in off_code: a(i)
        a('v_mov_b32 v9, s60')
        a(f'buffer_atomic_add v8, v9, s[{SDBG}:{SDBG+3}], 0 offen')
        a('s_mov_b64 exec, -1')
        a.label(L(tag))
    def w0_check(off, target, tag):
        a(f's_cmp_lg_u32 s{S_WAVE}, 0')
        a(f's_cbranch_scc1 {L(tag+"x")}')
        a('s_mov_b64 exec, 0xff')
        a('s_mov_b32 s76, 200000')
        a.label(L(tag))
        a('s_waitcnt vmcnt(0)')
        a(f'v_cmp_ne_u32 vcc, {target}, v10')
        a('s_nop 4')
        a(f's_cbranch_vccz {L(tag+"d")}')
        a('s_sub_u32 s76, s76, 1')
        a('s_cmp_eq_u32 s76, 0')
        a(f's_cbranch_scc1 {L(tag+"d")}')
        a(f'buffer_load_dword v10, v11, s[{SDBG}:{SDBG+3}], 0 offen offset:{off} sc1')
        a(f's_branch {L(tag)}')
        a.label(L(tag+'d'))
        a('s_mov_b64 exec, -1')
        a.label(L(tag+'x'))
    def w0_load(off, tag):
        a('v_lshlrev_b32 v11, 5, v1')
        a('v_mov_b32 v10, 0')
        a(f's_cmp_lg_u32 s{S_WAVE}, 0')
        a(f's_cbranch_scc1 {L(tag)}')
        a('s_mov_b64 exec, 0xff')
        a(f'buffer_load_dword v10, v11, s[{SDBG}:{SDBG+3}], 0 offen offset:{off} sc1')
        a('s_mov_b64 exec, -1')
        a.label(L(tag))
    a.label(L('g1evt'))
    a('s_waitcnt vmcnt(0)')
    a('s_mov_b32 s79, 99')
    a(f's_branch {L("g1back")}')
    a.label(L('g2evt'))
    a('s_waitcnt vmcnt(0)')
    a('s_mov_b32 s79, 99')
    a(f's_branch {L("g2back")}')


    a.label(L('aux'))
    VX = [224,225,226,227]; VW = [228,229,230,231,232,233,234]
    VL16, VFA, VFE, VT0, VT1 = 235, 236, 237, 238, 240
    VW2 = [220,221,222,223]
    TH = 176
    PC_, PD_ = 128, 144
    S_D = 55
    a(f's_sub_u32 s{S_D}, s{S_WAVE}, 4')
    a(f'v_mov_b32 v{VFA}, 0'); a(f'v_mov_b32 v{VFE}, 0')
    a('v_lshrrev_b32 v248, 3, v1')
    a('v_and_b32 v249, 7, v1')
    a('v_xor_b32 v249, v249, v248')
    a('v_lshlrev_b32 v249, 4, v249')
    a('v_lshlrev_b32 v248, 11, v248')
    a('v_add_u32 v248, v248, v249')
    for i in range(4):
        a(f'v_add_u32 v{VX[i]}, {i*8*2048 - i*1024}, v248') if i else a(f'v_mov_b32 v{VX[0]}, v248')
    for i in range(7):
        a(f'v_add_u32 v248, {i*64}, v1')
        a('v_mul_u32_u24 v249, 2341, v248')
        a('v_lshrrev_b32 v249, 16, v249')
        a('v_mul_u32_u24 v250, 28, v249')
        a('v_sub_u32 v250, v248, v250')
        a('v_bfe_u32 v248, v249, 3, 1')
        a('v_lshlrev_b32 v248, 1, v248')
        a('v_xor_b32 v250, v250, v248')
        a('v_lshlrev_b32 v250, 4, v250')
        a('v_mul_u32_u24 v249, 7168, v249')
        a('v_add_u32 v249, v249, v250')
        if i & 3: a(f'v_subrev_u32 v{VW[i]}, {(i&3)*1024}, v249')
        else: a(f'v_mov_b32 v{VW[i]}, v249')
    a(f'v_lshlrev_b32 v{VL16}, 4, v1')
    a('v_lshrrev_b32 v248, 4, v1')
    a('v_bfe_u32 v249, v1, 1, 3')
    a('v_xor_b32 v249, v249, v248')
    a('v_and_b32 v250, 1, v1')
    a('v_lshlrev_b32 v250, 4, v250')
    a('v_lshlrev_b32 v251, 11, v248')
    a('v_add_u32 v250, v250, v251')
    for i in range(4):
        a(f'v_xor_b32 v251, {(i>>1)<<2}, v249')
        a('v_lshlrev_b32 v251, 5, v251')
        a('v_add_u32 v251, v251, v250')
        a(f'v_add_u32 v{VW2[i]}, {i*4*2048 - i*1024}, v251') if i else a(f'v_mov_b32 v{VW2[0]}, v251')
    def gen_fft_consts():
        F.gen_consts(a, 1)
        F.gen_twiddle(a, 1)
        a('v_and_b32 v2, 31, v1')
        a('v_lshrrev_b32 v3, 5, v1')
        a('v_lshlrev_b32 v5, 5, v2')
        a('v_lshl_add_u32 v5, v3, 2, v5')
        a('v_cvt_f32_u32 v5, v5')
        a('v_mul_f32 v5, 0x3a000000, v5')
        a('v_mov_b32 v4, 0x3a000000')
        a('v_mov_b32 v7, 0x3b200000')
        for i in range(16):
            if i > 0: a(f'v_add_f32 v5, v5, v{4 if (i&3) else 7}')
            a(f'v_cos_f32 v{TH+i}, v5')
            a(f'v_sin_f32 v{TH+16+i}, v5')
    cnt = {'A': 0, 'B': 0, 'S': 0}
    def rbar(role):
        a('s_barrier'); cnt[role] += 1
    def flag_addr():
        a(f's_and_b32 s67, s{S_IDX}, 1')
        a(f's_lshl_b32 s69, s{S_SX}, 5')
        a('s_lshl_b32 s70, s67, 4')
        a('s_add_u32 s69, s69, s70')
        a(f's_lshl_b32 s70, s{S_KH}, 3')
        a('s_add_u32 s70, s69, s70')
        a(f'v_add_u32 v{VFA}, s70, v1')
        a(f'v_lshlrev_b32 v{VFA}, 2, v{VFA}')
        a(f'v_add_u32 v{VFA}, {FH_OFF}, v{VFA}')
        a(f's_xor_b32 s70, s{S_SLOT}, 2')
        a('s_lshl_b32 s70, s70, 2')
        a(f's_add_u32 s70, s70, {FX_OFF}')
        a(f'v_writelane_b32 v{VFA}, s70, 8')
        a(f's_add_u32 s70, s69, s{S_TN}')
        a('s_lshl_b32 s70, s70, 2')
        a(f's_add_u32 s70, s70, {FH_OFF}')
        a(f'v_writelane_b32 v{VFA}, s70, 9')
        a(f's_lshl_b32 s70, s{S_SLOT}, 2')
        a(f's_add_u32 s70, s70, {FX_OFF}')
        a(f'v_writelane_b32 v{VFA}, s70, 10')
        a('s_mov_b64 exec, 0x7ff')
        a(f'buffer_load_dword v{VFE}, v{VFA}, s[{SWS}:{SWS+3}], 0 offen sc1')
        a('s_mov_b64 exec, -1')
    def preread(base_code, nbytes, part, nparts):
        for i in base_code: a(i)
        a('v_lshlrev_b32 v243, 7, v1')
        a(f's_add_u32 s68, s68, {part*8192}')
        a(f'buffer_load_dword v244, v243, s[{SWS}:{SWS+3}], s68 offen')
    hbase = [f's_mul_i32 s68, s{S_TM}, 917504', f's_mul_i32 s69, s{S_TN}, {28*2048}', 's_add_u32 s68, s68, s69', f's_add_u32 s68, s68, {H_OFF}']
    a(f's_mul_i32 s64, s{S_SX}, {rotx}')
    if rbstag:
        a(f's_and_b32 s61, s{S_IDX}, 1')
        a('s_add_u32 s64, s64, s61')
    a(f's_cmp_ge_u32 s{S_WAVE}, 6')
    a(f's_cbranch_scc1 {L("S1")}')

    vA = VM()
    vB = vA
    a(f's_lshl_b32 s62, s{S_TM}, 18')
    a(f's_lshl_b32 s61, s{S_D}, 17')
    a('s_add_u32 s62, s62, s61')
    a(f's_mul_i32 s63, s{S_TN}, 448')
    a(f's_mul_i32 s61, s{S_D}, {32*7168}')
    a('s_add_u32 s63, s63, s61')
    a(f's_lshl_b32 s65, s{S_D}, 13')
    a(f's_mul_i32 s66, s{S_D}, 14336')
    a(f's_add_u32 s66, s66, {G1_WB}')
    def g1_x(j):
        a(f's_add_u32 s67, s64, {j}')
        a('s_and_b32 s67, s67, 15')
        a('s_lshl_b32 s67, s67, 7')
        a('s_add_u32 s67, s67, s62')
        for h in range(2):
            a(f's_add_u32 m0, s65, {G1_XB + (j % G1_NSX)*G1_XSZ + h*4096}')
            if h: a(f's_add_u32 s67, s67, {32*2048}')
            else: a('s_nop 0')
            for i in range(4):
                a(f'buffer_load_dwordx4 v{VX[i]}, s[{SX}:{SX+3}], s67 offen offset:{i*1024} lds'); vA.issue(('x1', j))
    def g1_w(j):
        a(f's_add_u32 s67, s64, {j}')
        a('s_and_b32 s67, s67, 15')
        a(f's_mul_i32 s67, s67, {64*7168}')
        a('s_add_u32 s67, s67, s63')
        for h in range(2):
            if h: a(f's_add_u32 s67, s67, {16*7168}')
            for i in range(7):
                if i in (0, 4):
                    a(f's_add_u32 m0, s66, {(j % G1_NSW)*G1_WSZ + h*7168 + (4096 if i == 4 else 0)}')
                    a('s_nop 0')
                a(f'buffer_load_dwordx4 v{VW[i]}, s[{SW1}:{SW1+3}], s67 offen offset:{(i&3)*1024} lds'); vA.issue(('w1', j))
    g1_x(0); g1_w(0)
    if startst: a('s_memrealtime s[90:91]')
    if startst: a('s_memrealtime s[92:93]')
    gen_fft_consts()
    rbar('A')
    g1_x(1); g1_w(1)
    flag_addr(); vA.issue(('cap', 0))
    g1_w(2)
    a(f's_waitcnt vmcnt({vA.wait_for([("x1",0),("w1",0)])})')
    if startst: a('s_memrealtime s[94:95]')
    rbar('A')
    if startst:
        a('s_waitcnt lgkmcnt(0)')
        a('v_mov_b32 v244, s90'); a('v_mov_b32 v245, s92'); a('v_mov_b32 v246, s94'); a('v_mov_b32 v247, 0')
        a(f's_lshl_b32 s60, s{S_SLOT}, 6')
        a(f's_add_u32 s60, s60, {ST_OFF + 0x180000 + 16}')
        a('v_mov_b32 v248, s60')
        a(f's_cmp_lg_u32 s{S_WAVE}, 4')
        a(f's_cbranch_scc1 {L("sst2")}')
        a('s_mov_b64 exec, 1')
        a(f'buffer_store_dwordx4 v[244:247], v248, s[{SWS}:{SWS+3}], 0 offen')
        a('s_mov_b64 exec, -1')
        a.label(L('sst2'))
    g1_w(3)
    for s in range(16):
        if s < 15:
            a(f's_waitcnt vmcnt({vA.wait_for([("x1",s+1),("w1",s+1)] + ([("cap",0)] if s == 2 else []))})')
        if s == 2: a(f'v_add_u32 v{VFE}, 1, v{VFE}')
        rbar('A')
        if s + G1_NSX < 16: g1_x(s + G1_NSX)
        if s + G1_NSW < 16: g1_w(s + G1_NSW)
    a(f's_lshl_b32 s63, s{S_N2}, 8')
    a(f's_lshl_b32 s61, s{S_D}, 16')
    a('s_add_u32 s63, s63, s61')
    a(f's_mul_i32 s61, s{S_KH}, {1792*2048}')
    a('s_add_u32 s63, s63, s61')
    def rot2_init():
        if rot2:
            a(f's_mul_i32 s64, s{S_SX}, 7')
            a('s_lshr_b32 s64, s64, 1')
        else:
            a('s_mov_b32 s64, 0')
    def kstep(j):
        a(f's_add_u32 s68, s64, {j}')
        a('s_cmp_ge_u32 s68, 28')
        a('s_cselect_b32 s67, 28, 0')
        a('s_sub_u32 s68, s68, s67')
    rot2_init()
    def g2_w(j):
        kstep(j)
        a('s_lshl_b32 s67, s68, 17')
        a('s_add_u32 s67, s67, s63')
        for h in range(2):
            a(f's_add_u32 m0, s65, {G2_WB + (j % G2_NSW)*G2_WSZ + h*4096}')
            if h: a(f's_add_u32 s67, s67, {16*2048}')
            else: a('s_nop 0')
            for i in range(4):
                a(f'buffer_load_dwordx4 v{VW2[i]}, s[{SW2}:{SW2+3}], s67 offen offset:{i*1024} lds'); vA.issue(('w2', j))
    for j in range(G2_NSW): g2_w(j)
    a(f's_mul_i32 s62, s{S_TM}, 917504')
    a(f's_mul_i32 s61, s{S_KH}, {224*2048}')
    a('s_add_u32 s62, s62, s61')
    a(f's_add_u32 s62, s62, {H_OFF}')
    a('s_add_u32 s62, s62, s65')
    a(f's_branch {L("C2")}')

    VW_STEP = 9
    a.label(L('S1'))
    a(f's_cmp_eq_u32 s{S_WAVE}, 6')
    a(f's_cbranch_scc1 {L("I1")}')
    flag_addr()
    gen_fft_consts()
    rbar('S')
    rbar('S')
    def s_atomic(off_code):
        a('s_mov_b64 exec, 1')
        a(f'v_mov_b32 v{VT0}, 1')
        for i in off_code: a(i)
        a(f'v_mov_b32 v{VT0+1}, s67')
        a(f'buffer_atomic_add v{VT0}, v{VT0+1}, s[{SDBG}:{SDBG+3}], 0 offen')
        a('s_mov_b64 exec, -1')
    def s_poll_issue(off):
        a('s_mov_b64 exec, 0xff')
        a(f'v_lshlrev_b32 v{VT0+1}, 5, v1')
        a(f'buffer_load_dword v{VT1}, v{VT0+1}, s[{SDBG}:{SDBG+3}], 0 offen offset:{off} sc1')
        a('s_mov_b64 exec, -1')
    def s_poll_check(off, target, lab):
        a('s_waitcnt vmcnt(0)')
        a('s_mov_b64 exec, 0xff')
        a(f'v_cmp_ne_u32 vcc, {target}, v{VT1}')
        a('s_nop 4')
        a(f's_cbranch_vccz {L(lab + "_d")}')
        poll_loop(a, L, lab, [f'buffer_load_dword v{VT1}, v{VT0+1}, s[{SDBG}:{SDBG+3}], 0 offen offset:{off} sc1'],
                  [f'v_cmp_ne_u32 vcc, {target}, v{VT1}'])
        a('s_mov_b64 exec, -1')
    for s in range(16):
        if s == 3:
            a('s_waitcnt vmcnt(0)')
            a(f'v_add_u32 v{VFE}, 1, v{VFE}')
        if s == 13:
            s_poll_check(12, 32, 'vpoll')
        if s == 15:
            a('s_waitcnt vmcnt(0)')
        rbar('S')
        if s == 3:
            a('s_mov_b64 exec, 1')
            a('s_mul_i32 s67, s96, 6')
            a('s_mov_b64 s[68:69], 1')
            a('s_lshl_b64 s[68:69], s[68:69], s67')
            a(f'v_mov_b32 v{VT1}, s68'); a(f'v_mov_b32 v{VT1+1}, s69')
            a(f's_lshl_b32 s67, s{S_SX}, 5')
            a(f'v_mov_b32 v{VT0+1}, s67')
            a(f'buffer_atomic_add_x2 v[{VT1}:{VT1+1}], v{VT0+1}, s[{SDBG}:{SDBG+3}], 0 offen')
            a('s_mov_b64 exec, -1')
        if s == 11:
            s_poll_issue(12)
        if s == 13:
            a(f's_lshl_b32 s61, s{S_SLOT}, 14')
            a(f's_add_u32 s61, s61, {VB_OFF}')
            for h in range(4):
                a(f's_mov_b32 m0, {F_LDS + h*4096}')
                a(f's_add_u32 s67, s61, {h*4096}')
                for i in range(4):
                    a(f'buffer_load_dwordx4 v{VL16}, s[{SWS}:{SWS+3}], s67 offen offset:{i*1024} sc1 lds')

    a(f's_branch {L("C2")}')
    a.label(L('I1'))
    gen_fft_consts()
    a('v_lshrrev_b32 v2, 2, v1')
    a('v_and_b32 v3, 3, v1')
    a('v_lshlrev_b32 v244, 14, v2')
    a('v_lshl_add_u32 v244, v3, 4, v244')
    a('v_and_b32 v4, 1, v3')
    a('v_lshl_add_u32 v4, v2, 1, v4')
    a('v_lshrrev_b32 v5, 1, v3')
    a('v_cmp_eq_u32 vcc, 0, v5')
    a('v_sub_u32 v6, 1024, v4')
    a('v_cndmask_b32 v12, v6, v4, vcc')
    a('v_lshlrev_b32 v245, 4, v12')
    a(f'v_add_u32 v245, {IMG_LDS}, v245')
    a('v_mov_b32 v14, 512')
    a('v_mov_b32 v15, -512')
    a('v_cndmask_b32 v246, v15, v14, vcc')
    a('v_cmp_eq_u32 vcc, 1024, v12')
    a(f'v_mov_b32 v14, {IMG_LDS + 512*16}')
    a('s_nop 0')
    a('v_cndmask_b32 v247, v245, v14, vcc')
    a('s_mov_b32 s77, 0x05040100')
    a('s_mov_b32 s78, 0x07060302')
    a(f's_lshl_b32 s79, s{S_SLOT}, 6')
    a(f's_add_u32 s79, s79, {VB_OFF}')
    rbar('B')
    rbar('B')
    def vcopy(q):
        d = 208 + 4*(q & 1); o = 216 + 4*(q & 1)
        if q == 0:
            a(f'ds_read_b128 v[{d}:{d+3}], v247')
        else:
            a('v_add_u32 v245, v245, v246')
            a(f'ds_read_b128 v[{d}:{d+3}], v245')
        a('s_waitcnt lgkmcnt(0)')
        a(f'v_perm_b32 v{o}, v{d+1}, v{d}, s77')
        a(f'v_perm_b32 v{o+1}, v{d+3}, v{d+2}, s77')
        a(f'v_perm_b32 v{o+2}, v{d+1}, v{d}, s78')
        a(f'v_perm_b32 v{o+3}, v{d+3}, v{d+2}, s78')
        a(f's_add_u32 s61, s79, {q*16*16384}')
        a(f'buffer_store_dwordx4 v[{o}:{o+3}], v244, s[{SWS}:{SWS+3}], s61 offen sc1')
    vcopy(0); vcopy(1)
    for s in range(16):
        if s == VW_STEP:
            a('s_waitcnt vmcnt(0)')
            s_atomic([f's_lshl_b32 s67, s{S_SX}, 5', 's_add_u32 s67, s67, 12'])
        rbar('B')
        if s < 7:
            vcopy(2*s+2); vcopy(2*s+3)
    a.label(L('C2'))
    a('v_lshrrev_b32 v2, 5, v1')
    a('v_bfe_u32 v3, v1, 2, 2')
    a('v_lshl_add_u32 v2, v2, 2, v3')
    a('v_lshlrev_b32 v2, 9, v2')
    a('v_bfe_u32 v3, v1, 4, 1')
    a('v_lshlrev_b32 v3, 2, v3')
    a('v_and_b32 v4, 3, v1')
    a('v_add_u32 v3, v3, v4')
    a('v_lshlrev_b32 v3, 6, v3')
    a(f's_lshl_b32 s60, s{S_W4}, 4')
    a(f's_add_u32 s60, s60, {F_LDS}')
    a('v_add3_u32 v8, v2, v3, s60')
    tr_loads(a, 8, 16*512, 8*512, 8)
    a('v_and_b32 v2, 31, v1')
    a('v_lshrrev_b32 v3, 5, v1')
    a('v_mul_u32_u24 v4, 33, v2')
    a('v_lshl_add_u32 v4, v3, 2, v4')
    a('v_lshlrev_b32 v4, 3, v4')
    a(f's_mul_i32 s60, s{S_W4}, {XS2}')
    a(f's_add_u32 s60, s60, {F2_EX}')
    a('v_add_u32 v10, s60, v4')
    a('v_add_u32 v5, 31, v2')
    a('v_and_b32 v5, 31, v5')
    a('v_mul_u32_u24 v5, 33, v5')
    a('v_add_u32 v5, 32, v5')
    a('v_lshlrev_b32 v5, 3, v5')
    a('v_add_u32 v14, s60, v5')
    a(f's_xor_b32 s61, s{S_W4}, 2')
    a(f's_and_b32 s67, s{S_W4}, 1')
    a(f's_or_b32 s67, s67, s{S_SLOT}')
    a('s_cmp_eq_u32 s67, 0')
    a(f's_cselect_b32 s61, s{S_W4}, s61')
    a(f's_mul_i32 s61, s61, {XS2}')
    a(f's_add_u32 s61, s61, {F2_EX}')
    a('v_sub_u32 v5, 31, v2')
    a('v_mul_u32_u24 v5, 33, v5')
    a('v_lshlrev_b32 v4, 2, v3')
    a('v_sub_u32 v5, v5, v4')
    a('v_add_u32 v5, 5, v5')
    a('v_lshlrev_b32 v5, 3, v5')
    a('v_add_u32 v11, s61, v5')
    a('v_lshlrev_b32 v12, 6, v2')
    a('v_lshl_add_u32 v12, v3, 4, v12')
    a(f's_lshl_b32 s60, s{S_W4}, 12')
    a(f's_add_u32 s60, s60, {F_LDS}')
    a('v_add_u32 v12, s60, v12')
    a('s_waitcnt lgkmcnt(0)')
    stage(a, True)
    mfma_wait(a)
    tw(a)
    stage(a, True)
    mfma_wait(a)
    for r in range(16):
        a(f'ds_write2_b32 v10, v{TR+r}, v{TI+r} offset0:{2*cidx(r)} offset1:{2*cidx(r)+1}')
    a('s_mov_b32 exec_hi, 0')
    a(f'ds_write2_b32 v14, v{TR}, v{TI} offset0:0 offset1:1')
    a('s_mov_b64 exec, -1')
    a('s_waitcnt lgkmcnt(0)')
    a('s_barrier')
    a(f's_cmp_lg_u32 s{S_WAVE}, 7')
    a(f's_cbranch_scc1 {L("nofl")}')
    a(f'v_mov_b32 v{VT0}, {YL}')
    a(f'ds_read_b32 v{VT0+1}, v{VT0}')
    a('s_waitcnt lgkmcnt(0)')
    a(f'v_readfirstlane_b32 s{S_MODE}, v{VT0+1}')
    a('s_mov_b64 exec, 0x200')
    a(f's_cmp_eq_u32 s{S_MODE}, 0')
    a(f's_cbranch_scc0 {L("fl1")}')
    a(f'buffer_store_dword v{VFE}, v{VFA}, s[{SWS}:{SWS+3}], 0 offen')
    a(f's_branch {L("fl2")}')
    a.label(L('fl1'))
    a(f'buffer_store_dword v{VFE}, v{VFA}, s[{SWS}:{SWS+3}], 0 offen sc1')
    a.label(L('fl2'))
    a('s_mov_b64 exec, -1')
    a.label(L('nofl'))
    for p in range(8):
        r = 2*p
        o0, o1 = (27-cidx(r))*2, (27-cidx(r+1))*2
        a(f'ds_read2_b32 v[{PC_+r}:{PC_+r+1}], v11 offset0:{o0} offset1:{o1}')
        a(f'ds_read2_b32 v[{PD_+r}:{PD_+r+1}], v11 offset0:{o0+1} offset1:{o1+1}')
    a('s_waitcnt lgkmcnt(0)')
    a('s_barrier')
    a(f's_cmp_ge_u32 s{S_WAVE}, 6')
    a(f's_cbranch_scc1 {L("nox2")}')
    a('s_mov_b64 exec, 0xff')
    poll_loop(a, L, 'hpoll', [f'buffer_load_dword v{VT0}, v{VFA}, s[{SWS}:{SWS+3}], 0 offen sc1'], [f'v_cmp_ne_u32 vcc, v{VT0}, v{VFE}'], sleep=0)
    a('s_mov_b64 exec, -1')
    def g2_x(j):
        kstep(j)
        a('s_lshl_b32 s67, s68, 14')
        a('s_add_u32 s67, s67, s62')
        for h in range(2):
            a(f's_add_u32 m0, s65, {G2_XB + (j % G2_NSX)*G2_XSZ + h*4096}')
            if h: a(f's_add_u32 s67, s67, 4096')
            else: a('s_nop 0')
            for i in range(4):
                a(f'buffer_load_dwordx4 v{VL16}, s[{SWS}:{SWS+3}], s67 offen offset:{i*1024}{x2sc} lds'); vA.issue(('x2', j))
    for j in range(G2_NSX): g2_x(j)
    a.label(L('nox2'))
    for p in range(8):
        r = 2*p
        A_, B_, C_, D_ = TR+r, TI+r, PC_+r, PD_+r
        pr = lambda x: f'v[{x}:{x+1}]'
        a(f'v_pk_add_f32 v[2:3], {pr(A_)}, {pr(C_)} neg_lo:[0,1] neg_hi:[0,1]')
        a(f'v_pk_add_f32 {pr(A_)}, {pr(A_)}, {pr(C_)}')
        a(f'v_pk_add_f32 {pr(B_)}, {pr(B_)}, {pr(D_)}')
        a(f'v_pk_mul_f32 v[2:3], v[2:3], {pr(TH+16+r)}')
        a(f'v_pk_fma_f32 v[2:3], {pr(B_)}, {pr(TH+r)}, v[2:3] neg_lo:[0,0,1] neg_hi:[0,0,1]')
        a(f'v_pk_add_f32 {pr(B_)}, {pr(A_)}, v[2:3] neg_lo:[0,1] neg_hi:[0,1]')
        a(f'v_pk_add_f32 {pr(A_)}, {pr(A_)}, v[2:3]')
    for yi, R in ((0, TR), (1, TI)):
        for qp in range(2):
            O = 40 + 4*(yi*2+qp)
            q = 2*qp
            a(f'v_cvt_pk_bf16_f32 v{O}, v{R+4*q}, v{R+4*q+1}')
            a(f'v_cvt_pk_bf16_f32 v{O+1}, v{R+4*q+2}, v{R+4*q+3}')
            a(f'v_cvt_pk_bf16_f32 v{O+2}, v{R+4*q+4}, v{R+4*q+5}')
            a(f'v_cvt_pk_bf16_f32 v{O+3}, v{R+4*q+6}, v{R+4*q+7}')
            a('s_nop 1')
            a(f'v_permlane32_swap_b32 v{O}, v{O+2}')
            a(f'v_permlane32_swap_b32 v{O+1}, v{O+3}')
            a('s_nop 0')
            a(f'ds_write_b128 v12, v[{O}:{O+3}] offset:{yi*2048 + q*16}')
    a(f's_cmp_eq_u32 s{S_WAVE}, 7')
    a(f's_cbranch_scc1 {L("S2")}')
    a(f's_cmp_eq_u32 s{S_WAVE}, 6')
    a(f's_cbranch_scc1 {L("I2")}')
    a(f's_waitcnt vmcnt({vA.wait_for([("x2",0),("w2",0)])}) lgkmcnt(0)')
    rbar('A')
    for s in range(27):
        a(f's_waitcnt vmcnt({vA.wait_for([("x2",s+1),("w2",s+1)])})')
        rbar('A')
        if s + G2_NSX < 28: g2_x(s + G2_NSX)
        if s + G2_NSW < 28: g2_w(s + G2_NSW)
    rbar('A'); rbar('A')
    a('s_endpgm')
    a.label(L('I2'))
    a('s_waitcnt lgkmcnt(0)')
    def erow(w):
        a(f's_lshl_b32 s60, s{S_SLOT}, 1')
        if w & 1: a('s_add_u32 s60, s60, 1')
        if w >> 1:
            a('s_sub_u32 s61, 1024, s60')
            a('s_cmp_eq_u32 s60, 0')
            a('s_cselect_b32 s60, 512, s61')
        a('s_lshl_b32 s60, s60, 12')
        a(f's_add_u32 s60, s60, {YT_OFF}')
    a(f'v_add_u32 v245, {F_LDS}, v{VL16}')
    rbar('B')
    def ycopy(q):
        w, i = q >> 2, q & 3
        d = 208 + 4*(q & 1)
        erow(w)
        a(f'ds_read_b128 v[{d}:{d+3}], v245 offset:{q*1024}')
        a('s_waitcnt lgkmcnt(0)')
        a(f'buffer_store_dwordx4 v[{d}:{d+3}], v{VL16}, s[{SWS}:{SWS+3}], s60 offen offset:{i*1024} sc1')
    ycopy(0); ycopy(1)
    for s in range(27):
        if s == 12:
            a('s_waitcnt vmcnt(0)')
            s_atomic([f's_lshl_b32 s67, s{S_SX}, 5', 's_add_u32 s67, s67, 16'])
        rbar('B')
        if s < 7:
            ycopy(2*s+2); ycopy(2*s+3)
    rbar('B'); rbar('B')
    a('s_endpgm')
    a.label(L('S2'))
    a('s_waitcnt lgkmcnt(0)')
    rbar('S')
    YS = 20
    for s in range(27):
        if s == YS:
            s_poll_check(16, 32, 'ypoll')
        if s == 26:
            a('s_waitcnt vmcnt(0)')
        rbar('S')
        if s == YS - 3:
            s_poll_issue(16)
        if s == YS:
            a('v_lshrrev_b32 v3, 4, v1')
            a('v_lshlrev_b32 v3, 12, v3')
            a('v_and_b32 v4, 15, v1')
            a('v_lshlrev_b32 v4, 4, v4')
            a('v_add_u32 v3, v3, v4')
            a(f's_lshl_b32 s60, s{S_N2}, 7')
            a(f's_lshl_b32 s61, s{S_KH}, 5')
            a('s_add_u32 s60, s60, s61')
            a('s_lshl_b32 s60, s60, 12')
            a(f's_lshl_b32 s61, s{S_TM}, 8')
            a('s_add_u32 s60, s60, s61')
            a(f's_add_u32 s60, s60, {YT_OFF}')
            for q in range(16):
                if q % 4 == 0:
                    a(f's_mov_b32 m0, {YL + (q//4)*4096}')
                e_off = (q // 8)*64 + (q % 8)*4
                a(f's_add_u32 s61, s60, {e_off*4096 - (q&3)*1024}')
                a(f'buffer_load_dwordx4 v3, s[{SWS}:{SWS+3}], s61 offen offset:{(q&3)*1024} sc1 lds')
    rbar('S')
    a('s_mov_b64 exec, 0x400')
    a(f's_cmp_eq_u32 s{S_MODE}, 0')
    a(f's_cbranch_scc0 {L("fx1")}')
    a(f'buffer_store_dword v{VFE}, v{VFA}, s[{SWS}:{SWS+3}], 0 offen')
    a(f's_branch {L("fx2")}')
    a.label(L('fx1'))
    a(f'buffer_store_dword v{VFE}, v{VFA}, s[{SWS}:{SWS+3}], 0 offen sc1')
    a.label(L('fx2'))
    a('s_mov_b64 exec, 0x100')
    poll_loop(a, L, 'xpoll', [f'buffer_load_dword v{VT0}, v{VFA}, s[{SWS}:{SWS+3}], 0 offen sc1'], [f'v_cmp_ne_u32 vcc, v{VT0}, v{VFE}'], sleep=0)
    a('s_mov_b64 exec, -1')
    rbar('S')
    a.label(L('end'))
    a('s_endpgm')
    common = 2
    assert nbar['M'] == 50 and all(cnt[r] + common == 50 for r in cnt), (nbar, cnt)

def build(fn, **kw):
    a = Asm()
    K = NAME + '_kernel'
    hdr = HEADER_COMMENT + f"; @launch grid=(256,1,1) block=(512,1,1) lds=163840\n"
    a.raw('.amdgcn_target "amdgcn-amd-amdhsa--gfx950"')
    gen_mega(a, K, **kw)
    open(fn, 'w').write(hdr + a.text() + kernel_desc(K, 256, 102, 256))

if __name__ == '__main__':
    build('f12.s')
    build('f12a.s', trig_always=True)
    build('f12s.s', stampon=True, startst=True)
    build('f12i.s', stampon=True, itstamp=True)
```
